```python
import torch

def _softmax(x, axis=-1):
    return torch.softmax(x, dim=axis)
def _gelu(x):
    return torch.nn.functional.gelu(x, approximate="tanh")
def _silu(x):
    return torch.nn.functional.silu(x)
def _sigmoid(x):
    return torch.sigmoid(x)
def _layernorm(x, axis=-1, eps=1e-5):
    m = x.mean(dim=axis, keepdim=True)
    v = x.var(dim=axis, keepdim=True, unbiased=False)
    return (x - m) / torch.sqrt(v + eps)
def _scatter_add(tgt, idx, src, axis=0):
    return tgt.clone().index_add_(axis, idx, src)
def _segment_sum(src, seg, n):
    out = torch.zeros((n,) + src.shape[1:], dtype=src.dtype)
    return out.index_add_(0, seg, src)
def _pad(x, pw):
    flat = tuple(v for pair in reversed(pw) for v in pair)
    return torch.nn.functional.pad(x, flat)

kernel_name = 'gated_mix__compressed_kv_cla__geglu_ffn__decode'

def setup_inputs():

    _w = (lambda a: (lambda t: t.to(torch.bfloat16) if t.is_floating_point() else t)(torch.as_tensor(a)))
    def _A_setup():
        B, H, Sq, Sk, D, M = 2, 32, 1, 8192, 128, 512
        Dc = 4 * D
        return {
            "x": _w((lambda *s: torch.randn(*s, dtype=torch.bfloat16) * 0.05)(B, Sq, M)),
            "c_kv": _w((lambda *s: torch.randn(*s, dtype=torch.bfloat16) * 1.6)(B, Sk, Dc)),
            "w_q": _w((lambda *s: torch.randn(*s, dtype=torch.bfloat16) * 6.4)(M, H, D) * (M ** -0.5)),
            "w_uk": _w((lambda *s: torch.randn(*s, dtype=torch.bfloat16) * 6.4)(Dc, H, D) * (Dc ** -0.5)),
            "w_uv": _w((lambda *s: torch.randn(*s, dtype=torch.bfloat16) * 1.6)(Dc, H, D) * (Dc ** -0.5)),
            "w_o": _w((lambda *s: torch.randn(*s, dtype=torch.bfloat16) * 1.6)(H, D, M) * ((H * D) ** -0.5)),
        }
    _A_in = _A_setup()

    def _B_setup():
        B, S, D, F = 2, 1, 512, 1792
        return {
            "x": _w((lambda *s: torch.randn(*s, dtype=torch.bfloat16) * 0.05)(B, S, D)),
            "w_gate": _w((lambda *s: torch.randn(*s, dtype=torch.bfloat16) * 0.4)(D, F)),
            "w_up": _w((lambda *s: torch.randn(*s, dtype=torch.bfloat16) * 0.4)(D, F)),
            "w_down": _w((lambda *s: torch.randn(*s, dtype=torch.bfloat16) * 0.4)(F, D)),
        }
    _B_in = _B_setup()

    return {
        "A_x": _A_in["x"],
        "A_c_kv": _A_in["c_kv"],
        "A_w_q": _A_in["w_q"],
        "A_w_uk": _A_in["w_uk"],
        "A_w_uv": _A_in["w_uv"],
        "A_w_o": _A_in["w_o"],
        "B_x": _B_in["x"],
        "B_w_gate": _B_in["w_gate"],
        "B_w_up": _B_in["w_up"],
        "B_w_down": _B_in["w_down"],
        "gate_w": _w((lambda *s: torch.randn(*s, dtype=torch.bfloat16) * 0.1)(512) * 16.0),
    }

def reference(A_x, A_c_kv, A_w_q, A_w_uk, A_w_uv, A_w_o, B_x, B_w_gate, B_w_up, B_w_down, gate_w):
    def _A_ref(x, c_kv, w_q, w_uk, w_uv, w_o):
        B, Sq, M = x.shape[0], x.shape[1], x.shape[2]
        Sk = c_kv.shape[1]
        H, D = w_q.shape[1], w_q.shape[2]
        q = torch.einsum("bqm,mhd->bhqd", x, w_q)
        k = torch.einsum("bkc,chd->bhkd", c_kv, w_uk)
        v = torch.einsum("bkc,chd->bhkd", c_kv, w_uv)
        scores = torch.einsum("bhqd,bhkd->bhqk", q, k) * (D ** -0.5)
        off = Sk - Sq
        qi = torch.arange(Sq)[:, None]
        kj = torch.arange(Sk)[None, :]
        cmask = kj <= (qi + off)
        scores = torch.where(cmask[None, None], scores, -1e9)
        p = _softmax(scores, axis=-1)
        ctx = torch.einsum("bhqk,bhkd->bhqd", p, v)
        return torch.einsum("bhqd,hdm->bqm", ctx, w_o)

    def _B_ref(x, w_gate, w_up, w_down):
        return (_gelu(x @ w_gate) * (x @ w_up)) @ w_down

    x = A_x
    g = _sigmoid((x * gate_w).sum(-1, keepdims=True))
    a = _A_ref(x, A_c_kv, A_w_q, A_w_uk, A_w_uv, A_w_o)
    b = _B_ref(x, B_w_gate, B_w_up, B_w_down)
    return g * a + (1 - g) * b
```

```python
class Asm:
    def __init__(self):
        self.lines = []
        self.kernels = []
    def __call__(self, s):
        for ln in s.strip("\n").split("\n"):
            self.lines.append("    " + ln.strip())
    def label(self, l):
        self.lines.append(l + ":")
    def comment(self, c):
        self.lines.append("    ; " + c)
    def nop(self, n):
        while n > 0:
            k = min(n, 16)
            self.lines.append(f"    s_nop {k-1}")
            n -= k
    def begin_kernel(self, name):
        self.lines.append(f".globl {name}")
        self.lines.append(".p2align 8")
        self.lines.append(f".type {name},@function")
        self.lines.append(f"{name}:")
    def end_kernel(self, name, vgpr, sgpr=96, accum=None):
        if accum is None:
            accum = (vgpr + 3) // 4 * 4
        self.lines.append('.section .rodata,"a"')
        self.lines.append(".p2align 6")
        self.lines.append(f".amdhsa_kernel {name}")
        self.lines.append(f"  .amdhsa_next_free_vgpr {vgpr}")
        self.lines.append(f"  .amdhsa_next_free_sgpr {sgpr}")
        self.lines.append(f"  .amdhsa_accum_offset {accum}")
        self.lines.append("  .amdhsa_group_segment_fixed_size 0")
        self.lines.append("  .amdhsa_kernarg_size 112")
        self.lines.append("  .amdhsa_user_sgpr_count 2")
        self.lines.append("  .amdhsa_user_sgpr_kernarg_segment_ptr 1")
        self.lines.append("  .amdhsa_system_sgpr_workgroup_id_x 1")
        self.lines.append(".end_amdhsa_kernel")
        self.lines.append(".text")
    def text(self):
        return "\n".join(self.lines) + "\n"

def vr(a, n):
    return f"v[{a}:{a+n-1}]" if n > 1 else f"v{a}"
def sr(a, n):
    return f"s[{a}:{a+n-1}]" if n > 1 else f"s{a}"
```

```python
import sys
from asmlib import *

WS_QABS = 0x0
WS_FFN = 0x10000
WS_ML = 0x50000
WS_PART = 0x100000
WS_OP = 0x200000
SC_BITS = 0x3e0293ee
import struct, math
def f32bits(x): return struct.unpack("<I", struct.pack("<f", x))[0]
SC_BITS = f32bits((128 ** -0.5) * math.log2(math.e))

A = Asm()
hdr = """; gated mix / compressed-kv attention / geglu ffn decode : 4-launch pipeline
; @launch kernel=k1_kernel grid=(256,1,1) block=(512,1,1) lds=16896
; @launch kernel=k2_kernel grid=(256,1,1) block=(256,1,1) lds=147456
; @launch kernel=k3_kernel grid=(256,1,1) block=(256,1,1) lds=20480
; @launch kernel=k4_kernel grid=(32,1,1) block=(256,1,1) lds=4096
.amdgcn_target "amdgcn-amd-amdhsa--gfx950"
.text
"""

def gen_selectors(A, vj16, vtmp, vsel):
    A(f"v_and_b32 v{vtmp}, 7, v{vj16}")
    for r in range(4):
        for par in range(2):
            lo = 0x0c0c0100 if par == 0 else 0x0c0c0302
            hi = 0x01000c0c if par == 0 else 0x03020c0c
            d = vsel + 2 * r + par
            A(f"v_mov_b32 v{d}, 0x0c0c0c0c")
            A(f"v_mov_b32 v{vtmp+1}, 0x{lo:08x}")
            A(f"v_cmp_eq_u32 vcc, {2*r}, v{vtmp}")
            A.nop(2)
            A(f"v_cndmask_b32 v{d}, v{d}, v{vtmp+1}, vcc")
            A(f"v_mov_b32 v{vtmp+1}, 0x{hi:08x}")
            A(f"v_cmp_eq_u32 vcc, {2*r+1}, v{vtmp}")
            A.nop(2)
            A(f"v_cndmask_b32 v{d}, v{d}, v{vtmp+1}, vcc")

def build_B(A, vdst, vsrc, par, vsel):
    for r in range(4):
        A(f"v_perm_b32 v{vdst+r}, v{vsrc}, v{vsrc}, v{vsel+2*r+par}")

def k1():
    A.begin_kernel("k1_kernel")
    A(f"""
    s_cmp_ge_u32 s2, 256
    s_cbranch_scc1 K1_END
    s_load_dwordx2 s[4:5], s[0:1], 0
    s_load_dwordx4 s[8:11], s[0:1], 16
    s_load_dwordx4 s[12:15], s[0:1], 56
    s_load_dwordx2 s[16:17], s[0:1], 104
    v_and_b32 v1, 63, v0
    v_lshrrev_b32 v5, 6, v0
    v_and_b32 v2, 15, v1
    v_lshrrev_b32 v3, 4, v1
    v_readfirstlane_b32 s18, v5
    s_and_b32 s21, s2, 7
    s_lshr_b32 s22, s2, 3
    s_lshr_b32 s23, s22, 3
    s_lshl_b32 s23, s23, 3
    s_add_u32 s19, s21, s23
    s_and_b32 s20, s22, 7
    """)
    gen_selectors(A, 2, 6, 16)
    A("s_waitcnt lgkmcnt(0)")
    A(f"""
    v_lshrrev_b32 v6, 3, v2
    v_lshlrev_b32 v6, 10, v6
    v_lshl_add_u32 v6, v3, 5, v6
    s_lshl_b32 s21, s18, 7
    v_add_u32 v6, s21, v6
    global_load_dwordx4 v[8:11], v6, s[4:5]
    global_load_dwordx4 v[12:15], v6, s[4:5] offset:16
    """)
    A(f"""
    v_lshlrev_b32 v4, 17, v3
    v_lshl_add_u32 v4, v2, 4, v4
    s_lshl_b32 s21, s18, 19
    s_lshl_b32 s22, s19, 8
    s_add_u32 s21, s21, s22
    v_add_u32 v4, s21, v4
    s_mov_b32 s24, s8
    s_mov_b32 s25, s9
    """)
    for s in range(16):
        A(f"global_load_dwordx4 {vr(68+4*s,4)}, v4, s[24:25]")
        if s < 15:
            A("s_add_u32 s24, s24, 8192\ns_addc_u32 s25, s25, 0")
    A(f"""
    s_cmp_lt_u32 s18, 4
    s_cbranch_scc0 K1_NOUK
    s_lshl_b32 s21, s20, 6
    s_lshl_b32 s22, s18, 4
    s_add_u32 s21, s21, s22
    v_add_u32 v5, s21, v2
    v_lshlrev_b32 v5, 13, v5
    v_lshl_add_u32 v5, v3, 4, v5
    s_lshl_b32 s22, s19, 8
    v_add_u32 v5, s22, v5
    """)
    for s in range(4):
        A(f"global_load_dwordx4 {vr(52+4*s,4)}, v5, s[10:11] offset:{64*s}")
    A.label("K1_NOUK")
    A(f"""
    v_mov_b32 v36, 0
    v_mov_b32 v37, 0
    v_mov_b32 v38, 0
    v_mov_b32 v39, 0
    s_mul_hi_u32 s27, s2, {(1<<32)//28 + 1}
    s_mul_i32 s21, s27, 28
    s_sub_u32 s26, s2, s21
    s_cmp_lt_u32 s2, 224
    s_cbranch_scc0 K1_NOFFN
    """)
    A(f"""
    v_lshrrev_b32 v6, 3, v2
    v_lshlrev_b32 v6, 10, v6
    v_lshl_add_u32 v6, v3, 2, v6
    s_lshl_b32 s21, s27, 7
    s_lshl_b32 s22, s18, 4
    s_add_u32 s21, s21, s22
    v_add_u32 v6, s21, v6
    global_load_dword v40, v6, s[4:5]
    s_lshl_b32 s21, s27, 6
    s_lshl_b32 s22, s18, 3
    s_add_u32 s21, s21, s22
    v_lshlrev_b32 v6, 1, v3
    v_add_u32 v6, s21, v6
    s_movk_i32 s22, 3584
    v_mul_lo_u32 v6, v6, s22
    v_and_b32 v7, 7, v2
    v_lshl_add_u32 v6, v7, 4, v6
    s_lshl_b32 s21, s26, 7
    v_add_u32 v6, s21, v6
    v_cmp_gt_u32 vcc, 8, v2
    v_mov_b32 v42, s14
    v_mov_b32 v43, s12
    v_cndmask_b32 v42, v42, v43, vcc
    v_mov_b32 v43, s15
    v_mov_b32 v41, s13
    v_cndmask_b32 v43, v43, v41, vcc
    v_add_co_u32 v42, vcc, v42, v6
    s_nop 1
    v_addc_co_u32 v43, vcc, 0, v43, vcc
    global_load_dwordx4 v[44:47], v[42:43], off
    global_load_dwordx4 v[48:51], v[42:43], off offset:3584
    s_waitcnt vmcnt(0)
    """)
    for s in range(2):
        build_B(A, 24, 40, s, 16)
        A.nop(2)
        A(f"v_mfma_f32_16x16x32_bf16 v[36:39], {vr(44+4*s,4)}, v[24:27], v[36:39]")
        A.nop(2)
    A.label("K1_NOFFN")
    A("""
    v_mov_b32 v32, 0
    v_mov_b32 v33, 0
    v_mov_b32 v34, 0
    v_mov_b32 v35, 0
    s_waitcnt vmcnt(0)
    """)
    for s in range(16):
        bb = 24 + 4 * (s & 1)
        build_B(A, bb, 8 + s // 2, s & 1, 16)
        A.nop(2)
        A(f"v_mfma_f32_16x16x32_bf16 v[32:35], {vr(68+4*s,4)}, {vr(bb,4)}, v[32:35]")
    A.nop(8)
    A(f"""
    v_lshlrev_b32 v6, 4, v1
    s_lshl_b32 s21, s18, 10
    v_add_u32 v6, s21, v6
    ds_write_b128 v6, v[32:35]
    ds_write_b128 v6, v[36:39] offset:8192
    s_waitcnt lgkmcnt(0)
    s_barrier
    v_lshlrev_b32 v6, 2, v0
    v_and_b32 v7, 0x3ff, v6
    v_lshrrev_b32 v5, 8, v0
    v_lshl_add_u32 v7, v5, 13, v7
    ds_read2st64_b32 v[44:45], v7 offset0:0 offset1:4
    ds_read2st64_b32 v[46:47], v7 offset0:8 offset1:12
    ds_read2st64_b32 v[48:49], v7 offset0:16 offset1:20
    ds_read2st64_b32 v[50:51], v7 offset0:24 offset1:28
    s_waitcnt lgkmcnt(0)
    v_add_f32 v44, v44, v45
    v_add_f32 v46, v46, v47
    v_add_f32 v48, v48, v49
    v_add_f32 v50, v50, v51
    v_add_f32 v44, v44, v46
    v_add_f32 v48, v48, v50
    v_add_f32 v44, v44, v48
    """)
    A(f"""
    v_and_b32 v6, 255, v0
    v_lshrrev_b32 v7, 2, v6
    v_and_b32 v45, 3, v6
    v_lshrrev_b32 v46, 4, v7
    v_lshl_add_u32 v45, v46, 2, v45
    v_and_b32 v46, 15, v7
    v_lshrrev_b32 v47, 3, v46
    v_and_b32 v48, 7, v46
    s_cmp_lt_u32 s18, 4
    s_cbranch_scc0 K1_FFNST
    v_lshl_add_u32 v49, v45, 3, v48
    v_lshl_add_u32 v49, v47, 7, v49
    v_lshlrev_b32 v49, 1, v49
    v_cvt_pk_bf16_f32 v44, v44, v44
    ds_write_b16 v49, v44 offset:16384
    s_branch K1_SYNC2
    """)
    A.label("K1_FFNST")
    A(f"""
    s_cmp_lt_u32 s2, 224
    s_cbranch_scc0 K1_SYNC2
    v_lshrrev_b32 v49, 3, v45
    v_and_b32 v50, 7, v45
    v_lshl_add_u32 v50, v50, 3, v48
    s_lshl_b32 s21, s26, 6
    v_add_u32 v50, s21, v50
    s_lshl_b32 s21, s27, 1
    v_add_u32 v49, s21, v49
    v_lshl_add_u32 v49, v49, 1, v47
    s_movk_i32 s22, 1792
    v_mul_lo_u32 v49, v49, s22
    v_add_u32 v49, v49, v50
    v_lshlrev_b32 v49, 2, v49
    v_add_u32 v49, 0x{WS_FFN:x}, v49
    global_store_dword v49, v44, s[16:17]
    """)
    A.label("K1_SYNC2")
    A(f"""
    s_waitcnt lgkmcnt(0)
    s_barrier
    s_cmp_lt_u32 s18, 4
    s_cbranch_scc0 K1_END
    v_and_b32 v6, 1, v2
    v_lshlrev_b32 v6, 8, v6
    v_lshl_add_u32 v6, v3, 4, v6
    ds_read_b128 v[68:71], v6 offset:16384
    ds_read_b128 v[72:75], v6 offset:16448
    ds_read_b128 v[76:79], v6 offset:16512
    ds_read_b128 v[80:83], v6 offset:16576
    v_mov_b32 v32, 0
    v_mov_b32 v33, 0
    v_mov_b32 v34, 0
    v_mov_b32 v35, 0
    s_waitcnt lgkmcnt(0)
    """)
    for s in range(4):
        A(f"v_mfma_f32_16x16x32_bf16 v[32:35], {vr(52+4*s,4)}, {vr(68+4*s,4)}, v[32:35]")
    A.nop(8)
    A(f"""
    s_mov_b32 s21, 0x{SC_BITS:08x}
    v_mul_f32 v32, s21, v32
    v_mul_f32 v33, s21, v33
    v_mul_f32 v34, s21, v34
    v_mul_f32 v35, s21, v35
    v_cvt_pk_bf16_f32 v32, v32, v33
    v_cvt_pk_bf16_f32 v33, v34, v35
    v_lshlrev_b32 v6, 5, v2
    v_add_u32 v6, s19, v6
    v_lshlrev_b32 v6, 9, v6
    v_lshl_add_u32 v6, v3, 2, v6
    s_lshl_b32 s21, s20, 6
    s_lshl_b32 s22, s18, 4
    s_add_u32 s21, s21, s22
    v_add_u32 v6, s21, v6
    v_lshlrev_b32 v6, 1, v6
    v_cmp_gt_u32 vcc, 2, v2
    s_and_saveexec_b64 s[28:29], vcc
    global_store_dwordx2 v6, v[32:33], s[16:17]
    """)
    A.label("K1_END")
    A("s_endpgm")
    A.end_kernel("k1_kernel", 132)

PITCH = 288
WAREA = 128 * PITCH
def k2():
    CF = 32
    S = 160
    O = 192
    P = 224
    A.begin_kernel("k2_kernel")
    A(f"""
    s_cmp_ge_u32 s2, 256
    s_cbranch_scc1 K2_END
    s_load_dwordx2 s[4:5], s[0:1], 8
    s_load_dwordx2 s[16:17], s[0:1], 104
    v_and_b32 v1, 63, v0
    v_lshrrev_b32 v5, 6, v0
    v_and_b32 v2, 15, v1
    v_lshrrev_b32 v3, 4, v1
    v_readfirstlane_b32 s18, v5
    s_and_b32 s21, s2, 7
    s_lshr_b32 s22, s2, 3
    s_and_b32 s19, s22, 1
    s_lshr_b32 s22, s22, 1
    s_lshl_b32 s21, s21, 4
    s_add_u32 s21, s21, s22
    s_lshr_b32 s20, s21, 6
    s_and_b32 s23, s21, 63
    s_waitcnt lgkmcnt(0)
    """)
    A(f"""
    s_lshl_b32 s24, s20, 5
    s_lshl_b32 s25, s19, 4
    s_add_u32 s24, s24, s25
    v_add_u32 v6, s24, v2
    v_lshlrev_b32 v6, 10, v6
    v_lshl_add_u32 v6, v3, 4, v6
    s_lshl_b32 s25, s18, 8
    v_add_u32 v6, s25, v6
    """)
    for s in range(4):
        A(f"global_load_dwordx4 {vr(16+4*s,4)}, v6, s[16:17] offset:{WS_QABS + 64*s}")
    A(f"""
    s_lshl_b32 s24, s21, 17
    s_add_u32 s24, s24, s25
    v_lshlrev_b32 v7, 10, v2
    v_lshl_add_u32 v7, v3, 4, v7
    v_add_u32 v7, s24, v7
    s_mov_b32 s26, s4
    s_mov_b32 s27, s5
    """)
    for t in range(8):
        for s in range(4):
            A(f"global_load_dwordx4 {vr(CF+(t*4+s)*4,4)}, v7, s[26:27] offset:{64*s}")
        if t < 7:
            A("s_add_u32 s26, s26, 16384\ns_addc_u32 s27, s27, 0")
    A(f"""
    s_mul_i32 s28, s18, {WAREA}
    v_mul_u32_u24 v8, {PITCH}, v2
    v_lshl_add_u32 v8, v3, 4, v8
    v_add_u32 v8, s28, v8
    """)
    for t in range(8):
        A(f"s_waitcnt vmcnt({(7-t)*4})")
        for s in range(4):
            c = "0" if s == 0 else vr(S+4*t,4)
            A(f"v_mfma_f32_16x16x32_bf16 {vr(S+4*t,4)}, {vr(CF+(t*4+s)*4,4)}, {vr(16+4*s,4)}, {c}")
        if t < 6:
            for s in range(4):
                A(f"ds_write_b128 v8, {vr(CF+(t*4+s)*4,4)} offset:{t*16*PITCH + 64*s}")
    A.nop(8)
    A(f"""
    v_lshlrev_b32 v9, 4, v1
    v_add_u32 v10, s28, v9
    """)
    for t in range(8):
        A(f"ds_write_b128 v10, {vr(S+4*t,4)} offset:{96*PITCH + t*1024}")
    A("s_waitcnt lgkmcnt(0)\ns_barrier")
    for o in range(1, 4):
        A(f"""
        s_add_u32 s24, s18, {o}
        s_and_b32 s24, s24, 3
        s_mul_i32 s24, s24, {WAREA}
        v_add_u32 v10, s24, v9
        """)
        for t in range(8):
            A(f"ds_read_b128 {vr(O+4*t,4)}, v10 offset:{96*PITCH + t*1024}")
        A("s_waitcnt lgkmcnt(0)")
        for k in range(32):
            A(f"v_add_f32 v{S+k}, v{S+k}, v{O+k}")
    A("s_barrier")
    for t in range(6, 8):
        for s in range(4):
            A(f"ds_write_b128 v8, {vr(CF+(t*4+s)*4,4)} offset:{t*16*PITCH + 64*s}")
    A(f"v_max_f32 v11, v{S}, v{S+1}")
    for k in range(2, 32, 2):
        A(f"v_max3_f32 v11, v11, v{S+k}, v{S+k+1}")
    A(f"""
    v_xor_b32 v12, 16, v1
    v_lshlrev_b32 v12, 2, v12
    v_xor_b32 v13, 32, v1
    v_lshlrev_b32 v13, 2, v13
    ds_bpermute_b32 v14, v12, v11
    s_waitcnt lgkmcnt(0)
    v_max_f32 v11, v11, v14
    ds_bpermute_b32 v14, v13, v11
    s_waitcnt lgkmcnt(0)
    v_max_f32 v11, v11, v14
    """)
    for k in range(32):
        A(f"v_sub_f32 v{S+k}, v{S+k}, v11")
    for k in range(32):
        A(f"v_exp_f32 v{S+k}, v{S+k}")
    A.nop(1)
    A(f"v_add_f32 v15, v{S}, v{S+1}")
    for k in range(2, 32):
        A(f"v_add_f32 v15, v15, v{S+k}")
    A(f"""
    ds_bpermute_b32 v14, v12, v15
    s_waitcnt lgkmcnt(0)
    v_add_f32 v15, v15, v14
    ds_bpermute_b32 v14, v13, v15
    s_waitcnt lgkmcnt(0)
    v_add_f32 v15, v15, v14
    """)
    for k in range(16):
        A(f"v_cvt_pk_bf16_f32 v{P+k}, v{S+2*k}, v{S+2*k+1}")
    A(f"""
    v_mov_b32 v10, v11
    v_mov_b32 v11, v15
    s_lshl_b32 s24, s20, 5
    s_lshl_b32 s25, s19, 4
    s_add_u32 s24, s24, s25
    v_add_u32 v6, s24, v2
    v_lshlrev_b32 v6, 6, v6
    v_add_u32 v6, s23, v6
    v_lshlrev_b32 v6, 3, v6
    v_add_u32 v6, 0x{WS_ML:x}, v6
    s_cmp_eq_u32 s18, 0
    s_cbranch_scc0 K2_NOML
    v_cmp_gt_u32 vcc, 16, v1
    s_and_saveexec_b64 s[30:31], vcc
    global_store_dwordx2 v6, v[10:11], s[16:17]
    s_mov_b64 exec, s[30:31]
    """)
    A.label("K2_NOML")
    A(f"""
    v_lshrrev_b32 v12, 2, v2
    v_lshl_add_u32 v12, v3, 2, v12
    v_mul_u32_u24 v12, {PITCH}, v12
    v_and_b32 v13, 3, v2
    v_lshl_add_u32 v12, v13, 3, v12
    v_add_u32 v12, s28, v12
    s_waitcnt lgkmcnt(0)
    """)
    bufs = [32, 40, 48, 56, 64, 72, 80, 88]
    seq = [(v, u) for v in range(8) for u in range(4)]
    def rd(idx):
        v, u = seq[idx]
        b = bufs[idx % 8]
        A(f"ds_read_b64_tr_b16 {vr(b,2)}, v12 offset:{(32*u)*PITCH + 32*v}")
        A(f"ds_read_b64_tr_b16 {vr(b+2,2)}, v12 offset:{(32*u+16)*PITCH + 32*v}")
    for idx in range(4):
        rd(idx)
    for idx, (v, u) in enumerate(seq):
        if idx + 4 < len(seq):
            rd(idx + 4)
            A(f"s_waitcnt lgkmcnt(8)")
        else:
            A(f"s_waitcnt lgkmcnt({2*(len(seq)-1-idx)})")
        b = bufs[idx % 8]
        c = "0" if u == 0 else vr(O+4*v,4)
        A(f"v_mfma_f32_16x16x32_bf16 {vr(O+4*v,4)}, {vr(b,4)}, {vr(P+4*u,4)}, {c}")
    A.nop(8)
    A(f"""
    s_lshl_b32 s24, s20, 5
    s_lshl_b32 s25, s19, 4
    s_add_u32 s24, s24, s25
    v_add_u32 v6, s24, v2
    v_lshlrev_b32 v6, 6, v6
    v_add_u32 v6, s23, v6
    v_lshlrev_b32 v6, 10, v6
    v_lshl_add_u32 v6, v3, 3, v6
    s_lshl_b32 s25, s18, 8
    v_add_u32 v6, s25, v6
    v_add_u32 v6, 0x{WS_OP:x}, v6
    """)
    for v in range(8):
        A(f"v_cvt_pk_bf16_f32 v{O+4*v}, v{O+4*v}, v{O+4*v+1}")
        A(f"v_cvt_pk_bf16_f32 v{O+4*v+1}, v{O+4*v+2}, v{O+4*v+3}")
        A(f"global_store_dwordx2 v6, {vr(O+4*v,2)}, s[16:17] offset:{32*v}")
    A.label("K2_END")
    A("s_endpgm")
    A.end_kernel("k2_kernel", 240)

def k3():
    A.begin_kernel("k3_kernel")
    A(f"""
    s_cmp_ge_u32 s2, 256
    s_cbranch_scc1 K3_END
    s_load_dwordx2 s[4:5], s[0:1], 0
    s_load_dwordx4 s[8:11], s[0:1], 32
    s_load_dwordx4 s[12:15], s[0:1], 72
    s_load_dwordx2 s[16:17], s[0:1], 104
    v_and_b32 v1, 63, v0
    v_lshrrev_b32 v5, 6, v0
    v_and_b32 v2, 15, v1
    v_lshrrev_b32 v3, 4, v1
    v_readfirstlane_b32 s18, v5
    s_and_b32 s21, s2, 7
    s_lshr_b32 s22, s2, 3
    s_lshr_b32 s23, s22, 3
    s_lshl_b32 s23, s23, 3
    s_add_u32 s19, s21, s23
    s_and_b32 s20, s22, 7
    """)
    gen_selectors(A, 2, 6, 16)
    A("s_waitcnt lgkmcnt(0)")
    A(f"""
    s_lshl_b32 s21, s20, 6
    s_lshl_b32 s22, s18, 4
    s_add_u32 s21, s21, s22
    v_add_u32 v6, s21, v3
    v_lshlrev_b32 v6, 13, v6
    v_lshl_add_u32 v6, v2, 4, v6
    s_lshl_b32 s22, s19, 8
    v_add_u32 v6, s22, v6
    s_mov_b32 s24, s8
    s_mov_b32 s25, s9
    """)
    for s in range(4):
        A(f"global_load_dwordx4 {vr(32+4*s,4)}, v6, s[24:25]")
        if s < 3:
            A("s_add_u32 s24, s24, 32768\ns_addc_u32 s25, s25, 0")
    A(f"""
    v_lshlrev_b32 v6, 10, v3
    v_lshl_add_u32 v6, v2, 4, v6
    s_lshl_b32 s21, s19, 17
    s_lshl_b32 s22, s18, 8
    s_add_u32 s21, s21, s22
    v_add_u32 v6, s21, v6
    s_mov_b32 s24, s10
    s_mov_b32 s25, s11
    """)
    for s in range(32):
        A(f"global_load_dwordx4 {vr(128+4*s,4)}, v6, s[24:25]")
        if s < 31:
            A("s_add_u32 s24, s24, 4096\ns_addc_u32 s25, s25, 0")
    A(f"""
    s_mul_i32 s21, s2, 7
    v_add_u32 v6, s21, v3
    v_add_u32 v7, 4, v6
    v_min_u32 v7, 1791, v7
    v_lshlrev_b32 v6, 10, v6
    v_lshlrev_b32 v7, 10, v7
    v_lshl_add_u32 v6, v2, 4, v6
    v_lshl_add_u32 v7, v2, 4, v7
    s_lshl_b32 s22, s18, 8
    v_add_u32 v6, s22, v6
    v_add_u32 v7, s22, v7
    global_load_dwordx4 v[48:51], v6, s[12:13]
    global_load_dwordx4 v[52:55], v7, s[12:13]
    """)
    A(f"""
    s_cmp_lt_u32 s18, 2
    s_cbranch_scc0 K3_NOML
    v_lshlrev_b32 v6, 4, v1
    s_lshl_b32 s21, s18, 10
    v_add_u32 v7, s21, v6
    global_load_dwordx4 v[56:59], v7, s[4:5]
    global_load_dwordx4 v[60:63], v6, s[14:15]
    s_lshl_b32 s21, s18, 5
    s_add_u32 s21, s21, s19
    s_lshl_b32 s21, s21, 9
    v_lshlrev_b32 v6, 3, v1
    v_add_u32 v6, s21, v6
    v_add_u32 v6, 0x{WS_ML:x}, v6
    global_load_dwordx2 v[64:65], v6, s[16:17]
    s_waitcnt vmcnt(0)
    """)
    A("v_mov_b32 v66, 0")
    for k in range(4):
        A(f"""
        v_lshlrev_b32 v67, 16, v{56+k}
        v_lshlrev_b32 v68, 16, v{60+k}
        v_fmac_f32 v66, v67, v68
        v_and_b32 v67, 0xffff0000, v{56+k}
        v_and_b32 v68, 0xffff0000, v{60+k}
        v_fmac_f32 v66, v67, v68
        """)
    def wave_reduce(op, v, tmp, addr):
        for sh in (1, 2, 4, 8, 16, 32):
            A(f"""
            v_xor_b32 v{addr}, {sh}, v1
            v_lshlrev_b32 v{addr}, 2, v{addr}
            ds_bpermute_b32 v{tmp}, v{addr}, v{v}
            s_waitcnt lgkmcnt(0)
            {op} v{v}, v{v}, v{tmp}
            """)
    wave_reduce("v_add_f32", 66, 67, 68)
    A("v_mov_b32 v69, v64")
    wave_reduce("v_max_f32", 69, 67, 68)
    A(f"""
    v_sub_f32 v64, v64, v69
    v_exp_f32 v64, v64
    s_nop 0
    v_mul_f32 v65, v65, v64
    """)
    wave_reduce("v_add_f32", 65, 67, 68)
    A(f"""
    v_rcp_f32 v65, v65
    v_mul_f32 v66, 0xbfb8aa3b, v66
    v_exp_f32 v66, v66
    s_nop 0
    v_mul_f32 v64, v64, v65
    v_add_f32 v66, 1.0, v66
    v_rcp_f32 v66, v66
    v_lshlrev_b32 v6, 2, v0
    ds_write_b32 v6, v64 offset:16384
    s_lshl_b32 s21, s18, 2
    v_mov_b32 v7, s21
    ds_write_b32 v7, v66 offset:16896
    """)
    A.label("K3_NOML")
    A(f"""
    s_cmp_eq_u32 s18, 2
    s_cbranch_scc0 K3_NOH
    v_and_b32 v6, 7, v1
    s_mul_i32 s21, s2, 7
    v_add_u32 v6, s21, v6
    v_min_u32 v6, 1791, v6
    v_bfe_u32 v7, v1, 3, 1
    s_movk_i32 s22, 1792
    v_mul_lo_u32 v7, v7, s22
    v_add_u32 v6, v6, v7
    v_lshlrev_b32 v6, 2, v6
    v_add_u32 v6, 0x{WS_FFN:x}, v6
    s_mov_b32 s24, s16
    s_mov_b32 s25, s17
    """)
    for ms in range(8):
        A(f"global_load_dword v{56+2*ms}, v6, s[24:25]")
        A(f"s_add_u32 s24, s24, {2*1792*4}\ns_addc_u32 s25, s25, 0")
        A(f"global_load_dword v{57+2*ms}, v6, s[24:25]")
        if ms < 7:
            A(f"s_add_u32 s24, s24, {2*1792*4}\ns_addc_u32 s25, s25, 0")
    A("s_waitcnt vmcnt(0)")
    for ms in range(1, 8):
        A(f"v_add_f32 v56, v56, v{56+2*ms}")
        A(f"v_add_f32 v57, v57, v{57+2*ms}")
    c1 = f32bits(-2 * math.sqrt(2 / math.pi) * math.log2(math.e))
    c2 = f32bits(0.044715)
    A(f"""
    v_mul_f32 v58, v56, v56
    v_mul_f32 v58, v58, v56
    v_mov_b32 v59, 0x{c2:08x}
    v_fma_f32 v58, v58, v59, v56
    v_mul_f32 v58, 0x{c1:08x}, v58
    v_exp_f32 v58, v58
    s_nop 0
    v_add_f32 v58, 1.0, v58
    v_rcp_f32 v58, v58
    s_nop 0
    v_mul_f32 v58, v58, v56
    v_mul_f32 v58, v58, v57
    v_lshlrev_b32 v6, 2, v1
    v_cmp_gt_u32 vcc, 16, v1
    s_and_saveexec_b64 s[30:31], vcc
    ds_write_b32 v6, v58 offset:16960
    s_mov_b64 exec, s[30:31]
    """)
    A.label("K3_NOH")
    A(f"""
    v_lshrrev_b32 v6, 3, v0
    v_and_b32 v7, 7, v0
    v_lshlrev_b32 v8, 10, v6
    v_lshl_add_u32 v8, v7, 4, v8
    s_lshl_b32 s21, s19, 16
    s_lshl_b32 s22, s20, 7
    s_add_u32 s21, s21, s22
    s_add_u32 s21, s21, 0x{WS_OP:x}
    v_add_u32 v8, s21, v8
    s_mov_b32 s24, s16
    s_mov_b32 s25, s17
    global_load_dwordx4 v[56:59], v8, s[24:25]
    s_add_u32 s24, s24, 32768
    s_addc_u32 s25, s25, 0
    global_load_dwordx4 v[60:63], v8, s[24:25]
    s_add_u32 s24, s24, {32*65536 - 32768}
    s_addc_u32 s25, s25, 0
    global_load_dwordx4 v[64:67], v8, s[24:25]
    s_add_u32 s24, s24, 32768
    s_addc_u32 s25, s25, 0
    global_load_dwordx4 v[68:71], v8, s[24:25]
    s_waitcnt lgkmcnt(0)
    s_barrier
    v_lshlrev_b32 v9, 2, v6
    ds_read_b32 v72, v9 offset:16384
    ds_read_b32 v73, v9 offset:16512
    ds_read_b32 v74, v9 offset:16640
    ds_read_b32 v75, v9 offset:16768
    s_waitcnt vmcnt(0) lgkmcnt(0)
    """)
    for r in range(4):
        b = r >> 1
        for k in range(4):
            src = 56 + 4 * r + k
            d0 = 80 + 8 * b + 2 * k
            A(f"v_lshlrev_b32 v76, 16, v{src}")
            A(f"v_and_b32 v77, 0xffff0000, v{src}")
            if r & 1:
                A(f"v_fmac_f32 v{d0}, v76, v{72+r}")
                A(f"v_fmac_f32 v{d0+1}, v77, v{72+r}")
            else:
                A(f"v_mul_f32 v{d0}, v76, v{72+r}")
                A(f"v_mul_f32 v{d0+1}, v77, v{72+r}")
    A(f"""
    v_lshlrev_b32 v9, 9, v6
    v_lshl_add_u32 v9, v7, 5, v9
    ds_write_b128 v9, v[80:83]
    ds_write_b128 v9, v[84:87] offset:16
    ds_write_b128 v9, v[88:91] offset:256
    ds_write_b128 v9, v[92:95] offset:272
    s_waitcnt lgkmcnt(0)
    s_barrier
    """)
    A(f"""
    s_cmp_lt_u32 s18, 2
    s_cbranch_scc0 K3_NOSUM
    v_lshlrev_b32 v9, 2, v0
    """)
    for k in range(16):
        A(f"ds_read2st64_b32 {vr(56+2*k,2)}, v9 offset0:{4*k} offset1:{4*k+2}")
    A("s_waitcnt lgkmcnt(0)")
    for k in range(1, 32):
        A(f"v_add_f32 v56, v56, v{56+k}")
    A(f"""
    v_cvt_pk_bf16_f32 v56, v56, v56
    v_lshlrev_b32 v9, 1, v0
    ds_write_b16 v9, v56 offset:17024
    """)
    A.label("K3_NOSUM")
    A(f"""
    s_waitcnt lgkmcnt(0)
    s_barrier
    """)
    A(f"""
    v_lshrrev_b32 v9, 3, v2
    v_lshlrev_b32 v9, 7, v9
    v_lshl_add_u32 v9, v3, 1, v9
    s_lshl_b32 s21, s18, 5
    v_add_u32 v9, s21, v9
    ds_read_u16 v56, v9 offset:17024
    ds_read_u16 v57, v9 offset:17032
    ds_read_u16 v58, v9 offset:17040
    ds_read_u16 v59, v9 offset:17048
    v_mov_b32 v24, 0
    v_mov_b32 v25, 0
    v_mov_b32 v26, 0
    v_mov_b32 v27, 0
    s_waitcnt lgkmcnt(0)
    """)
    for s in range(4):
        build_B(A, 28 if s & 1 else 60, 56 + s, 0, 16)
        A.nop(2)
        A(f"v_mfma_f32_16x16x32_bf16 v[24:27], {vr(32+4*s,4)}, {vr(28 if s & 1 else 60,4)}, v[24:27]")
    A.nop(8)
    A(f"""
    v_lshlrev_b32 v9, 4, v1
    s_lshl_b32 s21, s18, 10
    v_add_u32 v9, s21, v9
    ds_write_b128 v9, v[24:27]
    s_waitcnt lgkmcnt(0)
    s_barrier
    v_lshlrev_b32 v9, 2, v0
    ds_read2st64_b32 v[56:57], v9 offset0:0 offset1:4
    ds_read2st64_b32 v[58:59], v9 offset0:8 offset1:12
    v_lshrrev_b32 v7, 2, v0
    v_and_b32 v60, 3, v0
    v_lshrrev_b32 v61, 4, v7
    v_lshl_add_u32 v60, v61, 2, v60
    v_and_b32 v61, 15, v7
    v_lshrrev_b32 v62, 3, v61
    v_and_b32 v63, 7, v61
    v_lshlrev_b32 v64, 2, v62
    ds_read_b32 v65, v64 offset:16896
    s_waitcnt lgkmcnt(0)
    v_add_f32 v56, v56, v57
    v_add_f32 v58, v58, v59
    v_add_f32 v56, v56, v58
    v_mul_f32 v56, v56, v65
    v_cvt_pk_bf16_f32 v56, v56, v56
    v_lshl_add_u32 v64, v60, 3, v63
    v_lshl_add_u32 v64, v62, 7, v64
    v_lshlrev_b32 v64, 1, v64
    ds_write_b16 v64, v56 offset:17408
    """)
    A(f"""
    v_lshlrev_b32 v6, 2, v0
    ds_read_b32 v66, v6 offset:16960
    v_lshrrev_b32 v7, 3, v0
    v_and_b32 v7, 1, v7
    v_lshlrev_b32 v7, 2, v7
    ds_read_b32 v67, v7 offset:16896
    s_waitcnt lgkmcnt(0)
    v_sub_f32 v67, 1.0, v67
    v_mul_f32 v66, v66, v67
    v_and_b32 v7, 7, v0
    v_cmp_eq_u32 vcc, 7, v7
    s_nop 1
    v_cndmask_b32 v66, v66, 0, vcc
    v_cvt_pk_bf16_f32 v66, v66, v66
    v_lshlrev_b32 v6, 1, v0
    v_cmp_gt_u32 vcc, 16, v0
    s_and_saveexec_b64 s[30:31], vcc
    ds_write_b16 v6, v66 offset:17920
    s_mov_b64 exec, s[30:31]
    s_waitcnt lgkmcnt(0)
    s_barrier
    """)
    A(f"""
    v_lshrrev_b32 v9, 3, v2
    v_lshlrev_b32 v6, 4, v9
    v_lshl_add_u32 v6, v3, 1, v6
    v_lshlrev_b32 v9, 8, v9
    v_lshl_add_u32 v9, v3, 1, v9
    """)
    for s in range(32):
        A(f"ds_read_u16 v{56+s}, v9 offset:{17408 + 8*s}")
    A(f"""
    ds_read_u16 v88, v6 offset:17920
    ds_read_u16 v89, v6 offset:17928
    v_mov_b32 v24, 0
    v_mov_b32 v25, 0
    v_mov_b32 v26, 0
    v_mov_b32 v27, 0
    s_waitcnt vmcnt(0) lgkmcnt(0)
    """)
    for s in range(34):
        bb = 28 if s & 1 else 32
        build_B(A, bb, 56 + s, 0, 16)
        A.nop(2)
        a = vr(128 + 4 * s, 4) if s < 32 else vr(48 + 4 * (s - 32), 4)
        A(f"v_mfma_f32_16x16x32_bf16 v[24:27], {a}, {vr(bb,4)}, v[24:27]")
    A.nop(8)
    A(f"""
    v_lshrrev_b32 v6, 3, v2
    v_lshlrev_b32 v6, 9, v6
    v_lshl_add_u32 v6, v3, 5, v6
    v_and_b32 v7, 7, v2
    v_add_u32 v6, v6, v7
    s_lshl_b32 s21, s18, 7
    v_add_u32 v6, s21, v6
    s_lshl_b32 s21, s2, 10
    v_add_u32 v6, s21, v6
    v_lshlrev_b32 v6, 2, v6
    v_add_u32 v6, 0x{WS_PART:x}, v6
    """)
    for r in range(4):
        A(f"global_store_dword v6, v{24+r}, s[16:17] offset:{32*r}")
    A.label("K3_END")
    A("s_endpgm")
    A.end_kernel("k3_kernel", 256)

def k4():
    A.begin_kernel("k4_kernel")
    A(f"""
    s_cmp_ge_u32 s2, 32
    s_cbranch_scc1 K4_END
    s_load_dwordx2 s[8:9], s[0:1], 88
    s_load_dwordx2 s[16:17], s[0:1], 104
    v_lshrrev_b32 v2, 3, v0
    v_and_b32 v3, 7, v0
    v_lshlrev_b32 v4, 12, v2
    v_lshl_add_u32 v4, v3, 4, v4
    s_lshl_b32 s21, s2, 7
    s_add_u32 s21, s21, 0x{WS_PART:x}
    v_add_u32 v4, s21, v4
    s_waitcnt lgkmcnt(0)
    s_mov_b32 s24, s16
    s_mov_b32 s25, s17
    """)
    for i in range(8):
        A(f"global_load_dwordx4 {vr(8+4*i,4)}, v4, s[24:25]")
        if i < 7:
            A(f"s_add_u32 s24, s24, {32*4096}\ns_addc_u32 s25, s25, 0")
    A("s_waitcnt vmcnt(0)")
    for i in range(1, 8):
        for k in range(4):
            A(f"v_add_f32 v{8+k}, v{8+k}, v{8+4*i+k}")
    A(f"""
    v_lshlrev_b32 v5, 7, v2
    v_lshl_add_u32 v5, v3, 4, v5
    ds_write_b128 v5, v[8:11]
    s_waitcnt lgkmcnt(0)
    s_barrier
    v_cmp_gt_u32 vcc, 32, v0
    s_and_saveexec_b64 s[30:31], vcc
    s_cbranch_execz K4_END
    v_lshlrev_b32 v5, 2, v0
    """)
    for k in range(32):
        A(f"ds_read_b32 v{8+k}, v5 offset:{128*k}")
    A("s_waitcnt lgkmcnt(0)")
    for k in range(1, 32):
        A(f"v_add_f32 v8, v8, v{8+k}")
    A(f"""
    v_cvt_pk_bf16_f32 v8, v8, v8
    s_lshl_b32 s21, s2, 6
    v_lshlrev_b32 v5, 1, v0
    v_add_u32 v5, s21, v5
    global_store_short v5, v8, s[8:9]
    """)
    A.label("K4_END")
    A("s_endpgm")
    A.end_kernel("k4_kernel", 48)

k1(); k2(); k3(); k4()
open(sys.argv[1], "w").write(hdr + A.text())
```

```python
import sys, struct, math
from asmlib import *
def f32bits(x): return struct.unpack("<I", struct.pack("<f", x))[0]
SC_BITS = f32bits((128 ** -0.5) * math.log2(math.e))

WS_E1 = 0x0
WS_FF = 0x80000
WS_QA = 0x100000
WS_ML = 0x140000
WS_CX = 0x180000
WS_PT = 0x200000
WS_OP = 0x400000
WS_TS = 0x1000000

A = Asm()
STAMP = len(sys.argv) > 2 and sys.argv[2] == "stamp"
_st = [0]
def stamp():
    if not STAMP: return
    i = _st[0]; _st[0] += 1
    assert i < 16
    A(f"s_memrealtime s[{64+2*i}:{65+2*i}]")
def stamp_flush():
    if not STAMP: return
    n = _st[0]
    A("s_waitcnt lgkmcnt(0)")
    A("s_mov_b64 exec, 1")
    A("s_lshl_b32 s60, s2, 10\ns_lshl_b32 s61, s18, 7\ns_add_u32 s60, s60, s61")
    A(f"s_add_u32 s60, s60, 0x{WS_TS:x}\nv_mov_b32 v0, s60")
    for i in range(n):
        A(f"v_mov_b32 v2, s{64+2*i}\nv_mov_b32 v3, s{65+2*i}\nglobal_store_dwordx2 v0, v[2:3], s[16:17] offset:{8*i}")
    A("s_waitcnt vmcnt(0)")

KN = "gated_mix__compressed_kv_cla__geglu_ffn__decode_kernel"
hdr = f"""; gated mix / compressed-kv (absorbed MLA) attention / geglu ffn decode : single persistent kernel
; @launch grid=(256,1,1) block=(256,1,1) lds=163840
.amdgcn_target "amdgcn-amd-amdhsa--gfx950"
.text
"""
SEL = 16
def gen_selectors(vj16, vtmp):
    A(f"v_and_b32 v{vtmp}, 7, v{vj16}")
    for r in range(4):
        for par in range(2):
            lo = 0x0c0c0100 if par == 0 else 0x0c0c0302
            hi = 0x01000c0c if par == 0 else 0x03020c0c
            d = SEL + 2 * r + par
            A(f"""
            v_mov_b32 v{d}, 0x0c0c0c0c
            v_mov_b32 v{vtmp+1}, 0x{lo:08x}
            v_cmp_eq_u32 vcc, {2*r}, v{vtmp}
            s_nop 1
            v_cndmask_b32 v{d}, v{d}, v{vtmp+1}, vcc
            v_mov_b32 v{vtmp+1}, 0x{hi:08x}
            v_cmp_eq_u32 vcc, {2*r+1}, v{vtmp}
            s_nop 1
            v_cndmask_b32 v{d}, v{d}, v{vtmp+1}, vcc
            """)
def build_B(vdst, vsrc, par):
    for r in range(4):
        A(f"v_perm_b32 v{vdst+r}, v{vsrc}, v{vsrc}, v{SEL+2*r+par}")
TAG = "s34"
def tagcheck(regs, ok, retry_sleep=8):
    A(f"v_xor_b32 v4, {TAG}, v{regs[0]}")
    for r in regs[1:]:
        A(f"v_xor_b32 v5, {TAG}, v{r}\nv_or_b32 v4, v4, v5")
    A(f"""
    v_cmp_ne_u32 vcc, 0, v4
    s_cbranch_vccz {ok}
    s_sub_u32 s35, s35, 1
    s_cbranch_scc1 L_EXIT
    s_sleep {retry_sleep}
    """)
def wave_reduce(op, v, tmp, addr):
    for sh in (1, 2, 4, 8, 16, 32):
        A(f"""
        v_xor_b32 v{addr}, {sh}, v1
        v_lshlrev_b32 v{addr}, 2, v{addr}
        ds_bpermute_b32 v{tmp}, v{addr}, v{v}
        s_waitcnt lgkmcnt(0)
        {op} v{v}, v{v}, v{tmp}
        """)

SCR = 131072
NT = " nt"

A.begin_kernel(KN)
stamp()
A(f"""
s_cmp_ge_u32 s2, 256
s_cbranch_scc1 L_EXIT
s_load_dwordx4 s[4:7], s[0:1], 0
s_load_dwordx4 s[8:11], s[0:1], 16
s_load_dwordx4 s[12:15], s[0:1], 32
s_load_dwordx4 s[36:39], s[0:1], 56
s_load_dwordx4 s[40:43], s[0:1], 72
s_load_dwordx4 s[44:47], s[0:1], 88
s_load_dwordx2 s[16:17], s[0:1], 104
s_memrealtime s[48:49]
s_mov_b32 s35, 200000
v_and_b32 v1, 63, v0
v_lshrrev_b32 v5, 6, v0
v_and_b32 v2, 15, v1
v_lshrrev_b32 v3, 4, v1
v_readfirstlane_b32 s18, v5
s_and_b32 s21, s2, 7
s_lshr_b32 s22, s2, 3
s_lshr_b32 s23, s22, 3
s_lshl_b32 s23, s23, 3
s_add_u32 s19, s21, s23
s_and_b32 s20, s22, 7
""")
gen_selectors(2, 6)
A("s_waitcnt lgkmcnt(0)")
A(f"""
s_or_b32 s48, s48, 1
s_cmp_eq_u32 s2, 0
s_cbranch_scc0 L_NONONCE
s_cmp_eq_u32 s18, 0
s_cbranch_scc0 L_NONONCE
v_mov_b32 v6, 0
v_mov_b32 v7, s48
s_mov_b64 s[22:23], exec
s_mov_b64 exec, 1
global_store_dword v6, v7, s[46:47] sc0 sc1
s_mov_b64 exec, s[22:23]
""")
A.label("L_NONONCE")
A(f"""
v_lshrrev_b32 v6, 3, v2
v_lshlrev_b32 v6, 10, v6
v_lshl_add_u32 v6, v3, 3, v6
s_lshl_b32 s22, s18, 5
v_add_u32 v15, s22, v6
s_lshl_b32 s21, s20, 7
v_add_u32 v7, s21, v15
global_load_dwordx2 v[40:41], v7, s[4:5]
s_lshl_b32 s21, s20, 6
s_lshl_b32 s22, s18, 4
s_add_u32 s21, s21, s22
v_lshl_add_u32 v6, v3, 2, s21
v_lshlrev_b32 v7, 13, v6
v_lshl_add_u32 v7, v2, 4, v7
s_lshl_b32 s22, s19, 8
v_add_u32 v7, s22, v7
s_mov_b32 s24, s8
s_mov_b32 s25, s9
""")
for s in range(4):
    A(f"global_load_dwordx4 {vr(48+4*s,4)}, v7, s[24:25]{NT}")
    if s < 3: A("s_add_u32 s24, s24, 8192\ns_addc_u32 s25, s25, 0")
A(f"""
s_sleep 10
v_mov_b32 v6, 0
global_load_dword v44, v6, s[46:47] sc0 sc1
s_lshl_b32 s21, s20, 6
s_lshl_b32 s22, s18, 4
s_add_u32 s21, s21, s22
v_add_u32 v5, s21, v2
v_lshlrev_b32 v5, 13, v5
v_lshl_add_u32 v5, v3, 4, v5
s_lshl_b32 s22, s19, 8
v_add_u32 v5, s22, v5
""")
for s in range(4):
    A(f"global_load_dwordx4 {vr(80+4*s,4)}, v5, s[10:11] offset:{64*s}{NT}")
A(f"""
v_lshlrev_b32 v6, 4, v1
global_load_dwordx4 v[100:103], v6, s[4:5]
global_load_dwordx4 v[104:107], v6, s[4:5] offset:1024
global_load_dwordx4 v[108:111], v6, s[42:43]
s_mul_hi_u32 s27, s2, {(1<<32)//28 + 1}
s_mul_i32 s21, s27, 28
s_sub_u32 s26, s2, s21
s_min_u32 s27, s27, 7
s_and_b32 s21, s2, 7
s_lshr_b32 s22, s2, 3
s_and_b32 s28, s22, 1
s_lshr_b32 s22, s22, 1
s_lshl_b32 s21, s21, 4
s_add_u32 s29, s21, s22
s_lshr_b32 s30, s29, 6
s_and_b32 s31, s29, 63
v_mov_b32 v32, 0
v_mov_b32 v33, 0
v_mov_b32 v34, 0
v_mov_b32 v35, 0
s_waitcnt vmcnt(8)
""")
stamp()
for s in range(4):
    bb = 24 + 4 * (s & 1)
    build_B(bb, 40 + s // 2, s & 1)
    A.nop(2)
    A(f"v_mfma_f32_16x16x32_bf16 v[32:35], {vr(48+4*s,4)}, {vr(bb,4)}, v[32:35]")
A.nop(8)
A(f"""
v_lshlrev_b32 v6, 4, v1
s_lshl_b32 s21, s18, 10
s_add_u32 s21, s21, {SCR}
v_add_u32 v6, s21, v6
ds_write_b128 v6, v[32:35]
s_waitcnt lgkmcnt(0)
s_barrier
v_lshlrev_b32 v6, 2, v0
v_add_u32 v6, {SCR}, v6
ds_read2st64_b32 v[48:49], v6 offset0:0 offset1:4
ds_read2st64_b32 v[50:51], v6 offset0:8 offset1:12
s_waitcnt vmcnt(7)
""")
A.label("L_NONCE_CHK")
A(f"""
v_readfirstlane_b32 s34, v44
s_cmp_lg_u32 s34, 0
s_cbranch_scc1 L_NONCE_OK
s_sub_u32 s35, s35, 1
s_cbranch_scc1 L_EXIT
s_sleep 4
v_mov_b32 v6, 0
global_load_dword v44, v6, s[46:47] sc0 sc1
s_waitcnt vmcnt(0)
s_branch L_NONCE_CHK
""")
A.label("L_NONCE_OK")
A(f"""
s_waitcnt lgkmcnt(0)
v_add_f32 v48, v48, v49
v_add_f32 v50, v50, v51
v_add_f32 v48, v48, v50
v_mov_b32 v49, s34
s_lshl_b32 s21, s19, 3
s_add_u32 s21, s21, s20
s_lshl_b32 s21, s21, 11
s_add_u32 s21, s21, 0x{WS_E1:x}
v_lshl_add_u32 v6, v0, 3, s21
global_store_dwordx2 v6, v[48:49], s[16:17] sc0 sc1
""")
stamp()
A(f"""
s_lshl_b32 s24, s29, 17
s_lshl_b32 s25, s18, 8
s_add_u32 s24, s24, s25
v_lshlrev_b32 v6, 1, v3
v_xor_b32 v7, v6, v2
v_xor_b32 v8, 8, v7
v_lshlrev_b32 v9, 10, v3
v_lshl_add_u32 v12, v7, 4, v9
v_lshl_add_u32 v13, v8, 4, v9
v_add_u32 v12, s24, v12
v_add_u32 v13, s24, v13
s_mov_b32 s24, s6
s_mov_b32 s25, s7
s_lshl_b32 s33, s18, 15
""")
def dma(t0, t1):
    for t in range(t0, t1):
        A(f"s_add_u32 m0, s33, {t*1024}")
        A("s_nop 0")
        A(f"global_load_lds_dwordx4 v{12 + (t & 1)}, s[24:25]{NT}")
        if t < 31: A("s_add_u32 s24, s24, 4096\ns_addc_u32 s25, s25, 0")
dma(0, 16)
A(f"""
s_lshl_b32 s21, s19, 14
s_add_u32 s21, s21, 0x{WS_E1:x}
v_lshl_add_u32 v10, v0, 3, s21
v_add_u32 v11, 4096, v10
v_add_u32 v14, 8192, v10
v_add_u32 v9, 12288, v10
""")
def e1_loads():
    for j in range(8):
        base = [10, 11, 14, 9][j // 2]
        A(f"global_load_dwordx2 {vr(48+2*j,2)}, v{base}, s[16:17] offset:{2048*(j%2)} sc0 sc1")
e1_loads()
dma(16, 32)
A(f"""
s_lshl_b32 s21, s27, 7
v_add_u32 v7, s21, v15
global_load_dwordx2 v[42:43], v7, s[4:5]
s_lshl_b32 s21, s27, 6
s_lshl_b32 s22, s18, 4
s_add_u32 s21, s21, s22
v_lshl_add_u32 v6, v3, 2, s21
s_movk_i32 s22, 3584
v_mul_lo_u32 v6, v6, s22
v_and_b32 v7, 7, v2
v_lshl_add_u32 v6, v7, 4, v6
s_lshl_b32 s21, s26, 7
v_add_u32 v6, s21, v6
v_cmp_gt_u32 vcc, 8, v2
v_mov_b32 v8, s38
v_mov_b32 v5, s36
v_cndmask_b32 v8, v8, v5, vcc
v_mov_b32 v7, s39
v_mov_b32 v5, s37
v_cndmask_b32 v7, v7, v5, vcc
v_add_co_u32 v6, vcc, v8, v6
s_nop 1
v_addc_co_u32 v7, vcc, 0, v7, vcc
global_load_dwordx4 v[64:67], v[6:7], off{NT}
global_load_dwordx4 v[68:71], v[6:7], off offset:3584{NT}
v_add_co_u32 v6, vcc, 7168, v6
s_nop 1
v_addc_co_u32 v7, vcc, 0, v7, vcc
global_load_dwordx4 v[72:75], v[6:7], off{NT}
global_load_dwordx4 v[76:79], v[6:7], off offset:3584{NT}
""")
A("s_waitcnt vmcnt(21)")
stamp()
A.label("L_E1_CHK")
tagcheck([49 + 2 * j for j in range(8)], "L_E1_OK")
e1_loads()
A("s_waitcnt vmcnt(0)\ns_branch L_E1_CHK")
A.label("L_E1_OK")
stamp()
A(f"""
v_lshrrev_b32 v7, 2, v0
v_and_b32 v8, 3, v0
v_lshrrev_b32 v9, 4, v7
v_lshl_add_u32 v8, v9, 2, v8
v_and_b32 v9, 15, v7
v_lshrrev_b32 v10, 3, v9
v_and_b32 v11, 7, v9
v_add_f32 v48, v48, v50
v_add_f32 v52, v52, v54
v_add_f32 v56, v56, v58
v_add_f32 v60, v60, v62
v_add_f32 v48, v48, v52
v_add_f32 v56, v56, v60
v_add_f32 v48, v48, v56
v_lshl_add_u32 v49, v8, 3, v11
v_lshl_add_u32 v49, v10, 7, v49
v_lshlrev_b32 v49, 1, v49
v_add_u32 v49, {SCR}, v49
v_cvt_pk_bf16_f32 v48, v48, v48
ds_write_b16 v49, v48 offset:8192
s_waitcnt lgkmcnt(0)
s_barrier
v_and_b32 v6, 1, v2
v_lshlrev_b32 v6, 8, v6
v_lshl_add_u32 v6, v3, 4, v6
v_add_u32 v6, {SCR}, v6
ds_read_b128 v[48:51], v6 offset:8192
ds_read_b128 v[52:55], v6 offset:8256
ds_read_b128 v[56:59], v6 offset:8320
ds_read_b128 v[60:63], v6 offset:8384
v_mov_b32 v32, 0
v_mov_b32 v33, 0
v_mov_b32 v34, 0
v_mov_b32 v35, 0
s_waitcnt lgkmcnt(0)
""")
for s in range(4):
    A(f"v_mfma_f32_16x16x32_bf16 v[32:35], {vr(80+4*s,4)}, {vr(48+4*s,4)}, v[32:35]")
A.nop(8)
A(f"""
s_mov_b32 s21, 0x{SC_BITS:08x}
v_mul_f32 v32, s21, v32
v_mul_f32 v33, s21, v33
v_mul_f32 v34, s21, v34
v_mul_f32 v35, s21, v35
v_cvt_pk_bf16_f32 v32, v32, v33
v_cvt_pk_bf16_f32 v34, v34, v35
v_mov_b32 v33, s34
v_mov_b32 v35, s34
v_lshlrev_b32 v6, 5, v2
v_add_u32 v6, s19, v6
v_lshlrev_b32 v6, 8, v6
v_lshl_add_u32 v6, v3, 1, v6
s_lshl_b32 s21, s20, 5
s_lshl_b32 s22, s18, 3
s_add_u32 s21, s21, s22
v_add_u32 v6, s21, v6
v_lshlrev_b32 v6, 3, v6
v_add_u32 v6, 0x{WS_QA:x}, v6
v_cmp_gt_u32 vcc, 2, v2
s_and_saveexec_b64 s[22:23], vcc
global_store_dwordx4 v6, v[32:35], s[16:17] sc0 sc1
s_mov_b64 exec, s[22:23]
""")
stamp()
A(f"""
s_lshl_b32 s21, s20, 6
s_lshl_b32 s22, s18, 4
s_add_u32 s21, s21, s22
v_add_u32 v6, s21, v3
v_lshlrev_b32 v6, 13, v6
v_lshl_add_u32 v6, v2, 4, v6
s_lshl_b32 s22, s19, 8
v_add_u32 v6, s22, v6
s_mov_b32 s24, s12
s_mov_b32 s25, s13
""")
for s in range(4):
    A(f"global_load_dwordx4 a[{16+4*s}:{19+4*s}], v6, s[24:25]{NT}")
    if s < 3: A("s_add_u32 s24, s24, 32768\ns_addc_u32 s25, s25, 0")
A(f"""
s_lshl_b32 s21, s19, 7
s_lshl_b32 s22, s20, 4
s_add_u32 s21, s21, s22
v_add_u32 v6, s21, v3
v_lshlrev_b32 v6, 10, v6
v_lshl_add_u32 v6, v2, 4, v6
s_lshl_b32 s22, s18, 8
v_add_u32 v6, s22, v6
s_mov_b32 s24, s14
s_mov_b32 s25, s15
""")
for s in range(4):
    A(f"global_load_dwordx4 a[{4*s}:{4*s+3}], v6, s[24:25]{NT}")
    if s < 3: A("s_add_u32 s24, s24, 4096\ns_addc_u32 s25, s25, 0")
A(f"""
s_mul_i32 s21, s2, 7
v_add_u32 v6, s21, v3
v_add_u32 v7, 4, v6
v_min_u32 v7, 1791, v7
v_lshlrev_b32 v6, 10, v6
v_lshlrev_b32 v7, 10, v7
v_lshl_add_u32 v6, v2, 4, v6
v_lshl_add_u32 v7, v2, 4, v7
s_lshl_b32 s22, s18, 8
v_add_u32 v6, s22, v6
v_add_u32 v7, s22, v7
global_load_dwordx4 a[32:35], v6, s[40:41]{NT}
global_load_dwordx4 a[36:39], v7, s[40:41]{NT}
s_lshl_b32 s21, s30, 5
s_lshl_b32 s22, s28, 4
s_add_u32 s21, s21, s22
v_add_u32 v14, s21, v2
v_lshlrev_b32 v14, 11, v14
v_lshl_add_u32 v14, v3, 5, v14
s_lshl_b32 s22, s18, 9
v_add_u32 v14, s22, v14
v_add_u32 v14, 0x{WS_QA:x}, v14
""")
def e2_loads():
    for s in range(4):
        A(f"global_load_dwordx4 {vr(128+8*s,4)}, v14, s[16:17] offset:{128*s} sc0 sc1")
        A(f"global_load_dwordx4 {vr(132+8*s,4)}, v14, s[16:17] offset:{128*s+16} sc0 sc1")
e2_loads()
A("""
v_mov_b32 v36, 0
v_mov_b32 v37, 0
v_mov_b32 v38, 0
v_mov_b32 v39, 0
s_waitcnt vmcnt(18)
""")
for s in range(4):
    bb = 24 + 4 * (s & 1)
    build_B(bb, 42 + s // 2, s & 1)
    A.nop(2)
    A(f"v_mfma_f32_16x16x32_bf16 v[36:39], {vr(64+4*s,4)}, {vr(bb,4)}, v[36:39]")
A.nop(8)
A(f"""
v_lshlrev_b32 v6, 4, v1
s_lshl_b32 s21, s18, 10
s_add_u32 s21, s21, {SCR+4096}
v_add_u32 v6, s21, v6
ds_write_b128 v6, v[36:39]
""")
for b in range(2):
    A(f"v_mov_b32 v{45+b}, 0")
    for k in range(4):
        A(f"""
        v_lshlrev_b32 v4, 16, v{100+4*b+k}
        v_lshlrev_b32 v5, 16, v{108+k}
        v_fmac_f32 v{45+b}, v4, v5
        v_and_b32 v4, 0xffff0000, v{100+4*b+k}
        v_and_b32 v5, 0xffff0000, v{108+k}
        v_fmac_f32 v{45+b}, v4, v5
        """)
for sh in (1, 2, 4, 8, 16, 32):
    A(f"""
    v_xor_b32 v6, {sh}, v1
    v_lshlrev_b32 v6, 2, v6
    ds_bpermute_b32 v4, v6, v45
    ds_bpermute_b32 v5, v6, v46
    s_waitcnt lgkmcnt(0)
    v_add_f32 v45, v45, v4
    v_add_f32 v46, v46, v5
    """)
A(f"""
v_mul_f32 v45, 0xbfb8aa3b, v45
v_mul_f32 v46, 0xbfb8aa3b, v46
v_exp_f32 v45, v45
v_exp_f32 v46, v46
s_nop 0
v_add_f32 v45, 1.0, v45
v_add_f32 v46, 1.0, v46
v_rcp_f32 v45, v45
v_rcp_f32 v46, v46
s_nop 0
v_sub_f32 v4, 1.0, v45
v_sub_f32 v5, 1.0, v46
v_readfirstlane_b32 s50, v45
v_readfirstlane_b32 s51, v46
v_readfirstlane_b32 s52, v4
v_readfirstlane_b32 s53, v5
s_barrier
v_lshlrev_b32 v6, 2, v0
v_add_u32 v6, {SCR+4096}, v6
ds_read2st64_b32 v[52:53], v6 offset0:0 offset1:4
ds_read2st64_b32 v[54:55], v6 offset0:8 offset1:12
s_waitcnt lgkmcnt(0)
v_add_f32 v52, v52, v53
v_add_f32 v54, v54, v55
v_add_f32 v52, v52, v54
v_mov_b32 v53, s34
v_lshrrev_b32 v12, 3, v8
v_and_b32 v13, 7, v8
v_lshl_add_u32 v13, v13, 3, v11
s_lshl_b32 s21, s26, 6
v_add_u32 v13, s21, v13
s_lshl_b32 s21, s27, 1
v_add_u32 v12, s21, v12
v_lshl_add_u32 v12, v12, 1, v10
s_movk_i32 s22, 1792
v_mul_lo_u32 v12, v12, s22
v_add_u32 v12, v12, v13
v_lshlrev_b32 v12, 3, v12
v_add_u32 v12, 0x{WS_FF:x}, v12
s_cmp_lt_u32 s2, 224
s_cbranch_scc0 L_NOFFPUB
global_store_dwordx2 v12, v[52:53], s[16:17] sc0 sc1
""")
A.label("L_NOFFPUB")
A("s_waitcnt vmcnt(0)")
A.label("L_E2_CHK")
tagcheck([129 + 2 * k for k in range(16)], "L_E2_OK")
e2_loads()
A("s_waitcnt vmcnt(0)\ns_branch L_E2_CHK")
A.label("L_E2_OK")
stamp()
for s in range(4):
    for k in range(4):
        A(f"v_mov_b32 v{96+4*s+k}, v{128+8*s+2*k}")
S = 48; O = 48; P = 112
A(f"""
v_and_b32 v6, 7, v2
v_lshlrev_b32 v6, 1, v6
v_lshl_add_u32 v7, v2, 8, s33
""")
for s in range(4):
    A(f"v_add_u32 v5, {4*s}, v3\nv_xor_b32 v5, v5, v6\nv_lshl_add_u32 v{8+s}, v5, 4, v7")
def qk_rd(t):
    for s in range(4):
        A(f"ds_read_b128 {vr(128+(t*4+s)*4,4)}, v{8+s} offset:{t*4096}")
for t in range(3): qk_rd(t)
for t in range(8):
    if t + 3 < 8:
        qk_rd(t + 3); A("s_waitcnt lgkmcnt(12)")
    else:
        A(f"s_waitcnt lgkmcnt({4*(7-t)})")
    for s in range(4):
        c = "0" if s == 0 else vr(S+4*t,4)
        A(f"v_mfma_f32_16x16x32_bf16 {vr(S+4*t,4)}, {vr(128+(t*4+s)*4,4)}, {vr(96+4*s,4)}, {c}")
A.nop(8)
A(f"""
v_lshlrev_b32 v9, 4, v1
v_add_u32 v9, {SCR}, v9
s_lshl_b32 s24, s18, 13
v_add_u32 v10, s24, v9
s_barrier
""")
for t in range(8):
    A(f"ds_write_b128 v10, {vr(S+4*t,4)} offset:{t*1024}")
A("s_waitcnt lgkmcnt(0)\ns_barrier")
for o in range(1, 4):
    A(f"""
    s_add_u32 s24, s18, {o}
    s_and_b32 s24, s24, 3
    s_lshl_b32 s24, s24, 13
    v_add_u32 v10, s24, v9
    """)
    for t in range(8):
        A(f"ds_read_b128 {vr(128+32*(o-1)+4*t,4)}, v10 offset:{t*1024}")
for o in range(1, 4):
    A(f"s_waitcnt lgkmcnt({min(15,8*(3-o))})")
    for k in range(32):
        A(f"v_add_f32 v{S+k}, v{S+k}, v{128+32*(o-1)+k}")
A(f"v_max_f32 v11, v{S}, v{S+1}")
for k in range(2, 32, 2):
    A(f"v_max3_f32 v11, v11, v{S+k}, v{S+k+1}")
A(f"""
v_xor_b32 v12, 16, v1
v_lshlrev_b32 v12, 2, v12
v_xor_b32 v13, 32, v1
v_lshlrev_b32 v13, 2, v13
ds_bpermute_b32 v14, v12, v11
s_waitcnt lgkmcnt(0)
v_max_f32 v11, v11, v14
ds_bpermute_b32 v14, v13, v11
s_waitcnt lgkmcnt(0)
v_max_f32 v11, v11, v14
""")
for k in range(32):
    A(f"v_sub_f32 v{S+k}, v{S+k}, v11")
for k in range(32):
    A(f"v_exp_f32 v{S+k}, v{S+k}")
A.nop(1)
A(f"v_add_f32 v15, v{S}, v{S+1}")
for k in range(2, 32):
    A(f"v_add_f32 v15, v15, v{S+k}")
A(f"""
ds_bpermute_b32 v14, v12, v15
s_waitcnt lgkmcnt(0)
v_add_f32 v15, v15, v14
ds_bpermute_b32 v14, v13, v15
s_waitcnt lgkmcnt(0)
v_add_f32 v15, v15, v14
""")
for k in range(16):
    A(f"v_cvt_pk_bf16_f32 v{P+k}, v{S+2*k}, v{S+2*k+1}")
A(f"""
v_mov_b32 v24, v11
v_mov_b32 v25, s34
v_mov_b32 v26, v15
v_mov_b32 v27, s34
s_lshl_b32 s24, s30, 5
s_lshl_b32 s25, s28, 4
s_add_u32 s24, s24, s25
v_add_u32 v6, s24, v2
v_lshlrev_b32 v6, 6, v6
v_add_u32 v6, s31, v6
v_lshlrev_b32 v7, 4, v6
v_add_u32 v7, 0x{WS_ML:x}, v7
s_cmp_eq_u32 s18, 0
s_cbranch_scc0 L_NOML
v_cmp_gt_u32 vcc, 16, v1
s_and_saveexec_b64 s[22:23], vcc
global_store_dwordx4 v7, v[24:27], s[16:17] sc0 sc1
s_mov_b64 exec, s[22:23]
""")
A.label("L_NOML")
A(f"""
v_lshrrev_b32 v12, 2, v2
v_lshl_add_u32 v13, v3, 2, v12
v_lshlrev_b32 v14, 8, v13
v_and_b32 v13, 7, v13
v_lshl_add_u32 v14, v13, 5, v14
v_and_b32 v13, 3, v2
v_lshl_add_u32 v14, v13, 3, v14
v_add_u32 v14, s33, v14
""")
for v in range(8):
    A(f"v_xor_b32 v{128+v}, {32*v}, v14")
stamp()
bufs = [80, 84, 88, 92, 96, 100, 104, 108]
seq = [(v, u) for v in range(8) for u in range(4)]
def rd(idx):
    v, u = seq[idx]; b = bufs[idx % 8]
    A(f"ds_read_b64_tr_b16 {vr(b,2)}, v{128+v} offset:{(32*u)*256}")
    A(f"ds_read_b64_tr_b16 {vr(b+2,2)}, v{128+v} offset:{(32*u+16)*256}")
for idx in range(4): rd(idx)
for idx, (v, u) in enumerate(seq):
    if idx + 4 < len(seq):
        rd(idx + 4); A("s_waitcnt lgkmcnt(8)")
    else:
        A(f"s_waitcnt lgkmcnt({2*(len(seq)-1-idx)})")
    b = bufs[idx % 8]
    c = "0" if u == 0 else vr(O+4*v,4)
    A(f"v_mfma_f32_16x16x32_bf16 {vr(O+4*v,4)}, {vr(b,4)}, {vr(P+4*u,4)}, {c}")
    if u == 3 and v >= 1:
        pass
A.nop(8)
stamp()
A(f"""
v_lshlrev_b32 v6, 11, v6
v_lshl_add_u32 v6, v3, 4, v6
s_lshl_b32 s25, s18, 9
v_add_u32 v6, s25, v6
v_add_u32 v6, 0x{WS_OP:x}, v6
""")
for v in range(8):
    b = 80 + 4 * v
    A(f"v_cvt_pk_bf16_f32 v{b}, v{O+4*v}, v{O+4*v+1}")
    A(f"v_mov_b32 v{b+1}, s34")
    A(f"v_cvt_pk_bf16_f32 v{b+2}, v{O+4*v+2}, v{O+4*v+3}")
    A(f"v_mov_b32 v{b+3}, s34")
    A(f"global_store_dwordx4 v6, {vr(b,4)}, s[16:17] offset:{64*v} sc0 sc1")
stamp()
A(f"""
v_and_b32 v6, 7, v1
s_mul_i32 s21, s2, 7
v_add_u32 v6, s21, v6
v_min_u32 v6, 1791, v6
v_bfe_u32 v7, v1, 3, 1
s_movk_i32 s22, 1792
v_mul_lo_u32 v7, v7, s22
v_add_u32 v6, v6, v7
v_lshlrev_b32 v6, 3, v6
v_add_u32 v13, 0x{WS_FF:x}, v6
""")
def ff_loads():
    A("s_mov_b32 s24, s16\ns_mov_b32 s25, s17")
    for ms in range(8):
        A(f"global_load_dwordx2 {vr(128+4*ms,2)}, v13, s[24:25] sc0 sc1")
        A(f"s_add_u32 s24, s24, {2*1792*8}\ns_addc_u32 s25, s25, 0")
        A(f"global_load_dwordx2 {vr(130+4*ms,2)}, v13, s[24:25] sc0 sc1")
        if ms < 7: A(f"s_add_u32 s24, s24, {2*1792*8}\ns_addc_u32 s25, s25, 0")
ff_loads()
A(f"""
v_lshrrev_b32 v6, 4, v0
v_and_b32 v7, 15, v0
v_lshlrev_b32 v8, 11, v6
v_lshl_add_u32 v8, v7, 4, v8
s_lshl_b32 s21, s19, 17
s_lshl_b32 s22, s20, 8
s_add_u32 s21, s21, s22
s_add_u32 s21, s21, 0x{WS_OP:x}
v_add_u32 v8, s21, v8
v_lshlrev_b32 v9, 4, v6
s_lshl_b32 s21, s19, 10
s_add_u32 s21, s21, 0x{WS_ML:x}
v_add_u32 v9, s21, v9
""")
def e3_loads():
    A("s_mov_b32 s24, s16\ns_mov_b32 s25, s17")
    for p in range(8):
        A(f"global_load_dwordx4 {vr(48+4*p,4)}, v8, s[24:25] sc0 sc1")
        if p == 3: A(f"s_add_u32 s24, s24, {32*131072 - 3*32768}\ns_addc_u32 s25, s25, 0")
        elif p < 7: A(f"s_add_u32 s24, s24, 32768\ns_addc_u32 s25, s25, 0")
    for p in range(8):
        off = (p & 3) * 256
        if p < 4:
            A(f"global_load_dwordx4 {vr(80+4*p,4)}, v9, s[16:17] offset:{off} sc0 sc1")
        else:
            A(f"global_load_dwordx4 {vr(80+4*p,4)}, v10, s[16:17] offset:{off} sc0 sc1")
A("v_add_u32 v10, 32768, v9")
e3_loads()
A("s_waitcnt vmcnt(16)")
A.label("L_FF_CHK")
tagcheck([129 + 2 * k for k in range(16)], "L_FF_OK")
ff_loads()
A("s_waitcnt vmcnt(0)\ns_branch L_FF_CHK")
A.label("L_FF_OK")
for ms in range(1, 8):
    A(f"v_add_f32 v128, v128, v{128+4*ms}")
    A(f"v_add_f32 v130, v130, v{130+4*ms}")
c1 = f32bits(-2 * math.sqrt(2 / math.pi) * math.log2(math.e)); c2 = f32bits(0.044715)
A(f"""
v_mul_f32 v132, v128, v128
v_mul_f32 v132, v132, v128
v_mov_b32 v133, 0x{c2:08x}
v_fma_f32 v132, v132, v133, v128
v_mul_f32 v132, 0x{c1:08x}, v132
v_exp_f32 v132, v132
s_nop 0
v_add_f32 v132, 1.0, v132
v_rcp_f32 v132, v132
s_nop 0
v_mul_f32 v132, v132, v128
v_mul_f32 v132, v132, v130
v_mov_b32 v133, s52
v_mov_b32 v134, s53
v_bfe_u32 v7, v1, 3, 1
v_cmp_eq_u32 vcc, 1, v7
s_nop 1
v_cndmask_b32 v133, v133, v134, vcc
v_mul_f32 v132, v132, v133
v_and_b32 v7, 7, v1
v_cmp_eq_u32 vcc, 7, v7
s_nop 1
v_cndmask_b32 v132, v132, 0, vcc
v_cvt_pk_bf16_f32 v132, v132, v132
v_lshrrev_b32 v7, 3, v2
v_lshlrev_b32 v7, 3, v7
v_add_u32 v7, v7, v3
v_lshlrev_b32 v7, 2, v7
ds_bpermute_b32 v124, v7, v132
v_add_u32 v7, 16, v7
ds_bpermute_b32 v125, v7, v132
s_waitcnt vmcnt(0)
""")
stamp()
A.label("L_E3_CHK")
tagcheck([49 + 2 * k for k in range(16)] + [81 + 2 * k for k in range(16)], "L_E3_OK")
e3_loads()
A("s_waitcnt vmcnt(0)\ns_branch L_E3_CHK")
A.label("L_E3_OK")
stamp()
for b in range(2):
    m = [80 + 4 * (4 * b + q) for q in range(4)]
    A(f"v_max_f32 v112, v{m[0]}, v{m[1]}")
    A(f"v_max3_f32 v112, v112, v{m[2]}, v{m[3]}")
    for q in range(4):
        A(f"v_sub_f32 v{116+q}, v{m[q]}, v112")
    for q in range(4):
        A(f"v_exp_f32 v{116+q}, v{116+q}")
    A("s_nop 0")
    A(f"v_mul_f32 v113, v116, v{m[0]+2}")
    for q in range(1, 4):
        A(f"v_fmac_f32 v113, v{116+q}, v{m[q]+2}")
    for q in range(4):
        p = 4 * b + q
        for k in range(2):
            src = 48 + 4 * p + 2 * k
            d0 = 120 + 2 * k
            A(f"v_lshlrev_b32 v114, 16, v{src}")
            A(f"v_and_b32 v115, 0xffff0000, v{src}")
            if q:
                A(f"v_fmac_f32 v{d0}, v114, v{116+q}\nv_fmac_f32 v{d0+1}, v115, v{116+q}")
            else:
                A(f"v_mul_f32 v{d0}, v114, v{116+q}\nv_mul_f32 v{d0+1}, v115, v{116+q}")
    if b == 0:
        A(f"""
        s_barrier
        v_lshlrev_b32 v11, 9, v6
        v_lshl_add_u32 v11, v7, 4, v11
        v_add_u32 v11, {SCR}, v11
        v_lshlrev_b32 v12, 4, v6
        v_add_u32 v12, {SCR+8192}, v12
        """) if False else None
    if b == 0:
        A(f"""
        v_lshrrev_b32 v6, 4, v0
        v_and_b32 v7, 15, v0
        v_lshlrev_b32 v11, 9, v6
        v_lshl_add_u32 v11, v7, 4, v11
        v_add_u32 v11, {SCR}, v11
        v_lshlrev_b32 v12, 4, v6
        v_add_u32 v12, {SCR+8192}, v12
        s_barrier
        """)
    A(f"ds_write_b128 v11, v[120:123] offset:{256*b}")
    A(f"ds_write_b64 v12, v[112:113] offset:{8*b}")
A(f"""
s_waitcnt lgkmcnt(0)
s_barrier
s_cmp_lt_u32 s18, 2
s_cbranch_scc0 L_P4_NOSUM
v_lshlrev_b32 v9, 2, v0
v_add_u32 v9, {SCR}, v9
s_lshl_b32 s21, s18, 3
s_add_u32 s21, s21, {SCR+8192}
v_mov_b32 v10, s21
""")
for k in range(8):
    A(f"ds_read2st64_b32 {vr(48+2*k,2)}, v9 offset0:{4*k} offset1:{4*k+2}")
for k in range(16):
    A(f"ds_read_b64 {vr(64+2*k,2)}, v10 offset:{16*k}")
A("s_waitcnt lgkmcnt(0)")
A("v_max_f32 v112, v64, v66")
for k in range(2, 16, 2):
    A(f"v_max3_f32 v112, v112, v{64+2*k}, v{66+2*k}")
for k in range(16):
    A(f"v_sub_f32 v{64+2*k}, v{64+2*k}, v112")
for k in range(16):
    A(f"v_exp_f32 v{64+2*k}, v{64+2*k}")
A("s_nop 0")
A("v_mul_f32 v113, v64, v65\nv_mul_f32 v114, v64, v48")
for k in range(1, 16):
    A(f"v_fmac_f32 v113, v{64+2*k}, v{65+2*k}")
    A(f"v_fmac_f32 v114, v{64+2*k}, v{48+k}")
A(f"""
v_rcp_f32 v113, v113
s_nop 0
v_mul_f32 v114, v114, v113
v_cvt_pk_bf16_f32 v114, v114, v114
v_lshlrev_b32 v9, 1, v0
v_add_u32 v9, {SCR+8704}, v9
ds_write_b16 v9, v114
""")
A.label("L_P4_NOSUM")
A(f"""
s_waitcnt lgkmcnt(0)
s_barrier
v_lshrrev_b32 v9, 3, v2
v_lshlrev_b32 v9, 7, v9
v_lshl_add_u32 v9, v3, 1, v9
s_lshl_b32 s21, s18, 5
s_add_u32 s21, s21, {SCR+8704}
v_add_u32 v9, s21, v9
ds_read_u16 v48, v9
ds_read_u16 v49, v9 offset:8
ds_read_u16 v50, v9 offset:16
ds_read_u16 v51, v9 offset:24
v_mov_b32 v32, 0
v_mov_b32 v33, 0
v_mov_b32 v34, 0
v_mov_b32 v35, 0
s_waitcnt lgkmcnt(0)
""")
for s in range(4):
    bb = 28 if s & 1 else 24
    build_B(bb, 48 + s, 0)
    A.nop(2)
    A(f"v_mfma_f32_16x16x32_bf16 v[32:35], a[{16+4*s}:{19+4*s}], {vr(bb,4)}, v[32:35]")
A.nop(8)
A(f"""
v_lshlrev_b32 v9, 4, v1
s_lshl_b32 s21, s18, 10
s_add_u32 s21, s21, {SCR+12288}
v_add_u32 v9, s21, v9
ds_write_b128 v9, v[32:35]
s_waitcnt lgkmcnt(0)
s_barrier
v_lshlrev_b32 v9, 2, v0
v_add_u32 v9, {SCR+12288}, v9
ds_read2st64_b32 v[48:49], v9 offset0:0 offset1:4
ds_read2st64_b32 v[50:51], v9 offset0:8 offset1:12
v_lshrrev_b32 v7, 2, v0
v_and_b32 v52, 3, v0
v_lshrrev_b32 v53, 4, v7
v_lshl_add_u32 v52, v53, 2, v52
v_and_b32 v53, 15, v7
v_lshrrev_b32 v54, 3, v53
v_and_b32 v55, 7, v53
v_lshl_add_u32 v56, v52, 3, v55
v_lshl_add_u32 v56, v54, 7, v56
s_lshl_b32 s21, s19, 3
s_add_u32 s21, s21, s20
s_lshl_b32 s21, s21, 8
v_add_u32 v56, s21, v56
v_lshlrev_b32 v56, 3, v56
v_add_u32 v56, 0x{WS_CX:x}, v56
s_waitcnt lgkmcnt(0)
v_add_f32 v48, v48, v49
v_add_f32 v50, v50, v51
v_add_f32 v48, v48, v50
v_mov_b32 v49, s34
global_store_dwordx2 v56, v[48:49], s[16:17] sc0 sc1
""")
stamp()
A(f"""
v_bfe_u32 v6, v1, 4, 1
v_lshlrev_b32 v6, 7, v6
v_add_u32 v6, v6, v2
s_lshl_b32 s21, s19, 11
s_lshl_b32 s22, s20, 4
s_add_u32 s21, s21, s22
v_add_u32 v6, s21, v6
v_lshlrev_b32 v6, 3, v6
v_add_u32 v10, 0x{WS_CX:x}, v6
v_add_u32 v11, 4096, v10
v_add_u32 v14, 8192, v10
v_add_u32 v9, 12288, v10
""")
def cx_loads():
    for j in range(8):
        base = [10, 11, 14, 9][j // 2]
        A(f"global_load_dwordx2 {vr(48+2*j,2)}, v{base}, s[16:17] offset:{2048*(j%2)} sc0 sc1")
A.label("L_CX_POLL")
cx_loads()
A("s_waitcnt vmcnt(0)")
tagcheck([49 + 2 * j for j in range(8)], "L_CX_OK", 4)
A("s_branch L_CX_POLL")
A.label("L_CX_OK")
stamp()
A(f"""
v_add_f32 v48, v48, v50
v_add_f32 v52, v52, v54
v_add_f32 v56, v56, v58
v_add_f32 v60, v60, v62
v_add_f32 v48, v48, v52
v_add_f32 v56, v56, v60
v_add_f32 v48, v48, v56
v_mov_b32 v49, s50
v_mov_b32 v50, s51
v_bfe_u32 v7, v1, 4, 1
v_cmp_eq_u32 vcc, 1, v7
s_nop 1
v_cndmask_b32 v49, v49, v50, vcc
v_mul_f32 v48, v48, v49
v_cvt_pk_bf16_f32 v48, v48, v48
v_lshrrev_b32 v7, 3, v2
v_lshlrev_b32 v7, 4, v7
v_add_u32 v7, v7, v3
v_lshlrev_b32 v7, 2, v7
ds_bpermute_b32 v120, v7, v48
v_add_u32 v7, 16, v7
ds_bpermute_b32 v121, v7, v48
v_add_u32 v7, 16, v7
ds_bpermute_b32 v122, v7, v48
v_add_u32 v7, 16, v7
ds_bpermute_b32 v123, v7, v48
v_mov_b32 v32, 0
v_mov_b32 v33, 0
v_mov_b32 v34, 0
v_mov_b32 v35, 0
s_waitcnt lgkmcnt(0)
""")
for s in range(6):
    bb = 28 if s & 1 else 24
    build_B(bb, 120 + s, 0)
    A.nop(2)
    a = f"a[{4*s}:{4*s+3}]" if s < 4 else f"a[{32+4*(s-4)}:{35+4*(s-4)}]"
    A(f"v_mfma_f32_16x16x32_bf16 v[32:35], {a}, {vr(bb,4)}, v[32:35]")
A.nop(8)
A(f"""
v_lshrrev_b32 v6, 3, v2
v_lshlrev_b32 v6, 9, v6
v_lshl_add_u32 v6, v3, 5, v6
v_and_b32 v7, 7, v2
v_add_u32 v6, v6, v7
s_lshl_b32 s21, s18, 7
v_add_u32 v6, s21, v6
s_lshl_b32 s21, s2, 10
v_add_u32 v6, s21, v6
v_lshlrev_b32 v6, 3, v6
v_add_u32 v6, 0x{WS_PT:x}, v6
""")
for r in range(4):
    A(f"v_mov_b32 v{48+2*r}, v{32+r}\nv_mov_b32 v{49+2*r}, s34")
    A(f"global_store_dwordx2 v6, {vr(48+2*r,2)}, s[16:17] offset:{64*r} sc0 sc1")
stamp()
A(f"""
s_cmp_lt_u32 s2, 64
s_cbranch_scc0 L_END
v_lshrrev_b32 v6, 3, v0
v_and_b32 v7, 7, v0
v_lshlrev_b32 v8, 13, v6
v_lshl_add_u32 v8, v7, 4, v8
s_lshl_b32 s21, s2, 7
s_add_u32 s21, s21, 0x{WS_PT:x}
v_add_u32 v8, s21, v8
""")
A.label("L_E4_POLL")
A("s_mov_b32 s24, s16\ns_mov_b32 s25, s17")
for p in range(8):
    A(f"global_load_dwordx4 {vr(48+4*p,4)}, v8, s[24:25] sc0 sc1")
    if p < 7: A(f"s_add_u32 s24, s24, {32*8192}\ns_addc_u32 s25, s25, 0")
A("s_waitcnt vmcnt(0)")
tagcheck([49 + 2 * k for k in range(16)], "L_E4_OK", 4)
A("s_branch L_E4_POLL")
A.label("L_E4_OK")
for p in range(1, 8):
    A(f"v_add_f32 v48, v48, v{48+4*p}")
    A(f"v_add_f32 v50, v50, v{50+4*p}")
A(f"""
v_mov_b32 v49, v50
v_lshlrev_b32 v9, 6, v6
v_lshl_add_u32 v9, v7, 3, v9
v_add_u32 v9, {SCR+16384}, v9
ds_write_b64 v9, v[48:49]
s_waitcnt lgkmcnt(0)
s_barrier
v_cmp_gt_u32 vcc, 16, v0
s_and_saveexec_b64 s[22:23], vcc
s_cbranch_execz L_END2
v_lshlrev_b32 v9, 2, v0
v_add_u32 v9, {SCR+16384}, v9
""")
for k in range(32):
    A(f"ds_read_b32 v{48+k}, v9 offset:{64*k}")
A("s_waitcnt lgkmcnt(0)")
for k in range(1, 32):
    A(f"v_add_f32 v48, v48, v{48+k}")
A(f"""
v_cvt_pk_bf16_f32 v48, v48, v48
s_lshl_b32 s21, s2, 5
v_lshlrev_b32 v9, 1, v0
v_add_u32 v9, s21, v9
global_store_short v9, v48, s[44:45]
""")
A.label("L_END2")
A("s_mov_b64 exec, s[22:23]")
A.label("L_END")
A("s_waitcnt vmcnt(0)")
stamp()
stamp_flush()
A.label("L_EXIT")
A("s_endpgm")
A.end_kernel(KN, 320, sgpr=100, accum=256)
open(sys.argv[1], "w").write(hdr + A.text())
```

```python
import sys, struct, math
from asmlib import *
def f32bits(x): return struct.unpack("<I", struct.pack("<f", x))[0]
SC_BITS = f32bits((128 ** -0.5) * math.log2(math.e))

WS_E1 = 0x0
WS_FF = 0x80000
WS_QA = 0x100000
WS_ML = 0x140000
WS_CX = 0x180000
WS_PT = 0x200000
WS_OP = 0x400000
WS_TS = 0x1000000

A = Asm()
STAMP = len(sys.argv) > 2 and sys.argv[2] == "stamp"
_st = [0]
def stamp():
    if not STAMP: return
    i = _st[0]; _st[0] += 1
    assert i < 16
    A(f"s_memrealtime s[{64+2*i}:{65+2*i}]")
def stamp_flush():
    if not STAMP: return
    n = _st[0]
    A("s_waitcnt lgkmcnt(0)")
    A("s_mov_b64 exec, 1")
    A("s_lshl_b32 s60, s2, 10\ns_lshl_b32 s61, s18, 7\ns_add_u32 s60, s60, s61")
    A(f"s_add_u32 s60, s60, 0x{WS_TS:x}\nv_mov_b32 v0, s60")
    for i in range(n):
        A(f"v_mov_b32 v2, s{64+2*i}\nv_mov_b32 v3, s{65+2*i}\nglobal_store_dwordx2 v0, v[2:3], s[16:17] offset:{8*i}")
    A("s_waitcnt vmcnt(0)")

KN = "gated_mix__compressed_kv_cla__geglu_ffn__decode_kernel"
hdr = f"""; gated mix / compressed-kv (absorbed MLA) attention / geglu ffn decode : single persistent kernel
; @launch grid=(256,1,1) block=(256,1,1) lds=163840
.amdgcn_target "amdgcn-amd-amdhsa--gfx950"
.text
"""
SEL = 16
def gen_selectors(vj16, vtmp):
    A(f"v_and_b32 v{vtmp}, 7, v{vj16}")
    for r in range(4):
        for par in range(2):
            lo = 0x0c0c0100 if par == 0 else 0x0c0c0302
            hi = 0x01000c0c if par == 0 else 0x03020c0c
            d = SEL + 2 * r + par
            A(f"""
            v_mov_b32 v{d}, 0x0c0c0c0c
            v_mov_b32 v{vtmp+1}, 0x{lo:08x}
            v_cmp_eq_u32 vcc, {2*r}, v{vtmp}
            s_nop 1
            v_cndmask_b32 v{d}, v{d}, v{vtmp+1}, vcc
            v_mov_b32 v{vtmp+1}, 0x{hi:08x}
            v_cmp_eq_u32 vcc, {2*r+1}, v{vtmp}
            s_nop 1
            v_cndmask_b32 v{d}, v{d}, v{vtmp+1}, vcc
            """)
def build_B(vdst, vsrc, par):
    for r in range(4):
        A(f"v_perm_b32 v{vdst+r}, v{vsrc}, v{vsrc}, v{SEL+2*r+par}")
TAG = "s34"
def tagcheck(regs, ok, retry_sleep=1):
    A(f"v_xor_b32 v4, {TAG}, v{regs[0]}")
    for r in regs[1:]:
        A(f"v_xor_b32 v5, {TAG}, v{r}\nv_or_b32 v4, v4, v5")
    A(f"""
    v_cmp_ne_u32 vcc, 0, v4
    s_cbranch_vccz {ok}
    s_sub_u32 s35, s35, 1
    s_cbranch_scc1 L_EXIT
    s_sleep {retry_sleep}
    """)
def wave_reduce(op, v, tmp, addr):
    for sh in (1, 2, 4, 8, 16, 32):
        A(f"""
        v_xor_b32 v{addr}, {sh}, v1
        v_lshlrev_b32 v{addr}, 2, v{addr}
        ds_bpermute_b32 v{tmp}, v{addr}, v{v}
        s_waitcnt lgkmcnt(0)
        {op} v{v}, v{v}, v{tmp}
        """)

SCR = 131072
NT = " nt"

A.begin_kernel(KN)
stamp()
A(f"""
s_cmp_ge_u32 s2, 256
s_cbranch_scc1 L_EXIT
s_load_dwordx4 s[4:7], s[0:1], 0
s_load_dwordx4 s[8:11], s[0:1], 16
s_load_dwordx4 s[12:15], s[0:1], 32
s_load_dwordx4 s[36:39], s[0:1], 56
s_load_dwordx4 s[40:43], s[0:1], 72
s_load_dwordx4 s[44:47], s[0:1], 88
s_load_dwordx2 s[16:17], s[0:1], 104
s_memrealtime s[48:49]
s_mov_b32 s35, 200000
v_and_b32 v1, 63, v0
v_lshrrev_b32 v5, 6, v0
v_and_b32 v2, 15, v1
v_lshrrev_b32 v3, 4, v1
v_readfirstlane_b32 s18, v5
s_and_b32 s21, s2, 7
s_lshr_b32 s22, s2, 3
s_lshr_b32 s23, s22, 3
s_lshl_b32 s23, s23, 3
s_add_u32 s19, s21, s23
s_and_b32 s20, s22, 7
""")
gen_selectors(2, 6)
A("s_waitcnt lgkmcnt(0)")
A(f"""
s_or_b32 s48, s48, 1
s_cmp_eq_u32 s2, 0
s_cbranch_scc0 L_NONONCE
s_cmp_eq_u32 s18, 0
s_cbranch_scc0 L_NONONCE
v_mov_b32 v6, 0
v_mov_b32 v7, s48
s_mov_b64 s[22:23], exec
s_mov_b64 exec, 1
global_store_dword v6, v7, s[46:47] sc0 sc1
s_mov_b64 exec, s[22:23]
""")
A.label("L_NONONCE")
A(f"""
v_lshrrev_b32 v6, 3, v2
v_lshlrev_b32 v6, 10, v6
v_lshl_add_u32 v6, v3, 3, v6
s_lshl_b32 s22, s18, 5
v_add_u32 v15, s22, v6
s_lshl_b32 s21, s20, 7
v_add_u32 v7, s21, v15
global_load_dwordx2 v[40:41], v7, s[4:5]
s_lshl_b32 s21, s20, 6
s_lshl_b32 s22, s18, 4
s_add_u32 s21, s21, s22
v_lshl_add_u32 v6, v3, 2, s21
v_lshlrev_b32 v7, 13, v6
v_lshl_add_u32 v7, v2, 4, v7
s_lshl_b32 s22, s19, 8
v_add_u32 v7, s22, v7
s_mov_b32 s24, s8
s_mov_b32 s25, s9
""")
for s in range(4):
    A(f"global_load_dwordx4 {vr(48+4*s,4)}, v7, s[24:25]{NT}")
    if s < 3: A("s_add_u32 s24, s24, 8192\ns_addc_u32 s25, s25, 0")
A(f"""
s_sleep 10
v_mov_b32 v6, 0
global_load_dword v44, v6, s[46:47] sc0 sc1
s_lshl_b32 s21, s20, 6
s_lshl_b32 s22, s18, 4
s_add_u32 s21, s21, s22
v_add_u32 v5, s21, v2
v_lshlrev_b32 v5, 13, v5
v_lshl_add_u32 v5, v3, 4, v5
s_lshl_b32 s22, s19, 8
v_add_u32 v5, s22, v5
""")
for s in range(4):
    A(f"global_load_dwordx4 {vr(80+4*s,4)}, v5, s[10:11] offset:{64*s}{NT}")
A(f"""
v_lshlrev_b32 v6, 4, v1
global_load_dwordx4 v[100:103], v6, s[4:5]
global_load_dwordx4 v[104:107], v6, s[4:5] offset:1024
global_load_dwordx4 v[108:111], v6, s[42:43]
s_mul_hi_u32 s27, s2, {(1<<32)//28 + 1}
s_mul_i32 s21, s27, 28
s_sub_u32 s26, s2, s21
s_min_u32 s27, s27, 7
s_and_b32 s21, s2, 7
s_lshr_b32 s22, s2, 3
s_and_b32 s28, s22, 1
s_lshr_b32 s22, s22, 1
s_lshl_b32 s21, s21, 4
s_add_u32 s29, s21, s22
s_lshr_b32 s30, s29, 6
s_and_b32 s31, s29, 63
v_mov_b32 v32, 0
v_mov_b32 v33, 0
v_mov_b32 v34, 0
v_mov_b32 v35, 0
s_waitcnt vmcnt(8)
""")
stamp()
for s in range(4):
    bb = 24 + 4 * (s & 1)
    build_B(bb, 40 + s // 2, s & 1)
    A.nop(2)
    A(f"v_mfma_f32_16x16x32_bf16 v[32:35], {vr(48+4*s,4)}, {vr(bb,4)}, v[32:35]")
A.nop(8)
A(f"""
v_lshlrev_b32 v6, 4, v1
s_lshl_b32 s21, s18, 10
s_add_u32 s21, s21, {SCR}
v_add_u32 v6, s21, v6
ds_write_b128 v6, v[32:35]
s_waitcnt lgkmcnt(0)
s_barrier
v_lshlrev_b32 v6, 2, v0
v_add_u32 v6, {SCR}, v6
ds_read2st64_b32 v[48:49], v6 offset0:0 offset1:4
ds_read2st64_b32 v[50:51], v6 offset0:8 offset1:12
s_waitcnt vmcnt(7)
""")
A.label("L_NONCE_CHK")
A(f"""
v_readfirstlane_b32 s34, v44
s_cmp_lg_u32 s34, 0
s_cbranch_scc1 L_NONCE_OK
s_sub_u32 s35, s35, 1
s_cbranch_scc1 L_EXIT
s_sleep 4
v_mov_b32 v6, 0
global_load_dword v44, v6, s[46:47] sc0 sc1
s_waitcnt vmcnt(0)
s_branch L_NONCE_CHK
""")
A.label("L_NONCE_OK")
A(f"""
s_waitcnt lgkmcnt(0)
v_add_f32 v48, v48, v49
v_add_f32 v50, v50, v51
v_add_f32 v48, v48, v50
v_mov_b32 v49, s34
s_lshl_b32 s21, s19, 3
s_add_u32 s21, s21, s20
s_lshl_b32 s21, s21, 11
s_add_u32 s21, s21, 0x{WS_E1:x}
v_lshl_add_u32 v6, v0, 3, s21
global_store_dwordx2 v6, v[48:49], s[16:17] sc0 sc1
""")
stamp()
A(f"""
s_lshl_b32 s24, s29, 17
s_lshl_b32 s25, s18, 8
s_add_u32 s24, s24, s25
v_lshlrev_b32 v6, 1, v3
v_xor_b32 v7, v6, v2
v_xor_b32 v8, 8, v7
v_lshlrev_b32 v9, 10, v3
v_lshl_add_u32 v12, v7, 4, v9
v_lshl_add_u32 v13, v8, 4, v9
v_add_u32 v12, s24, v12
v_add_u32 v13, s24, v13
s_mov_b32 s24, s6
s_mov_b32 s25, s7
s_lshl_b32 s33, s18, 15
""")
def dma(t0, t1):
    for t in range(t0, t1):
        A(f"s_add_u32 m0, s33, {t*1024}")
        A("s_nop 0")
        A(f"global_load_lds_dwordx4 v{12 + (t & 1)}, s[24:25]{NT}")
        if t < 31: A("s_add_u32 s24, s24, 4096\ns_addc_u32 s25, s25, 0")
dma(0, 16)
A(f"""
s_lshl_b32 s21, s19, 14
s_add_u32 s21, s21, 0x{WS_E1:x}
v_lshl_add_u32 v10, v0, 3, s21
v_add_u32 v11, 4096, v10
v_add_u32 v14, 8192, v10
v_add_u32 v9, 12288, v10
""")
def e1_loads():
    for j in range(8):
        base = [10, 11, 14, 9][j // 2]
        A(f"global_load_dwordx2 {vr(48+2*j,2)}, v{base}, s[16:17] offset:{2048*(j%2)} sc0 sc1")
e1_loads()
dma(16, 32)
A(f"""
s_lshl_b32 s21, s27, 7
v_add_u32 v7, s21, v15
global_load_dwordx2 v[42:43], v7, s[4:5]
s_lshl_b32 s21, s27, 6
s_lshl_b32 s22, s18, 4
s_add_u32 s21, s21, s22
v_lshl_add_u32 v6, v3, 2, s21
s_movk_i32 s22, 3584
v_mul_lo_u32 v6, v6, s22
v_and_b32 v7, 7, v2
v_lshl_add_u32 v6, v7, 4, v6
s_lshl_b32 s21, s26, 7
v_add_u32 v6, s21, v6
v_cmp_gt_u32 vcc, 8, v2
v_mov_b32 v8, s38
v_mov_b32 v5, s36
v_cndmask_b32 v8, v8, v5, vcc
v_mov_b32 v7, s39
v_mov_b32 v5, s37
v_cndmask_b32 v7, v7, v5, vcc
v_add_co_u32 v6, vcc, v8, v6
s_nop 1
v_addc_co_u32 v7, vcc, 0, v7, vcc
global_load_dwordx4 v[64:67], v[6:7], off{NT}
global_load_dwordx4 v[68:71], v[6:7], off offset:3584{NT}
v_add_co_u32 v6, vcc, 7168, v6
s_nop 1
v_addc_co_u32 v7, vcc, 0, v7, vcc
global_load_dwordx4 v[72:75], v[6:7], off{NT}
global_load_dwordx4 v[76:79], v[6:7], off offset:3584{NT}
""")
A("s_waitcnt vmcnt(21)")
stamp()
A.label("L_E1_CHK")
tagcheck([49 + 2 * j for j in range(8)], "L_E1_OK")
e1_loads()
A("s_waitcnt vmcnt(0)\ns_branch L_E1_CHK")
A.label("L_E1_OK")
stamp()
A(f"""
v_lshrrev_b32 v7, 2, v0
v_and_b32 v8, 3, v0
v_lshrrev_b32 v9, 4, v7
v_lshl_add_u32 v8, v9, 2, v8
v_and_b32 v9, 15, v7
v_lshrrev_b32 v10, 3, v9
v_and_b32 v11, 7, v9
v_add_f32 v48, v48, v50
v_add_f32 v52, v52, v54
v_add_f32 v56, v56, v58
v_add_f32 v60, v60, v62
v_add_f32 v48, v48, v52
v_add_f32 v56, v56, v60
v_add_f32 v48, v48, v56
v_lshl_add_u32 v49, v8, 3, v11
v_lshl_add_u32 v49, v10, 7, v49
v_lshlrev_b32 v49, 1, v49
v_add_u32 v49, {SCR}, v49
v_cvt_pk_bf16_f32 v48, v48, v48
ds_write_b16 v49, v48 offset:8192
s_waitcnt lgkmcnt(0)
s_barrier
v_and_b32 v6, 1, v2
v_lshlrev_b32 v6, 8, v6
v_lshl_add_u32 v6, v3, 4, v6
v_add_u32 v6, {SCR}, v6
ds_read_b128 v[48:51], v6 offset:8192
ds_read_b128 v[52:55], v6 offset:8256
ds_read_b128 v[56:59], v6 offset:8320
ds_read_b128 v[60:63], v6 offset:8384
v_mov_b32 v32, 0
v_mov_b32 v33, 0
v_mov_b32 v34, 0
v_mov_b32 v35, 0
s_waitcnt lgkmcnt(0)
""")
for s in range(4):
    A(f"v_mfma_f32_16x16x32_bf16 v[32:35], {vr(80+4*s,4)}, {vr(48+4*s,4)}, v[32:35]")
A.nop(8)
A(f"""
s_mov_b32 s21, 0x{SC_BITS:08x}
v_mul_f32 v32, s21, v32
v_mul_f32 v33, s21, v33
v_mul_f32 v34, s21, v34
v_mul_f32 v35, s21, v35
v_cvt_pk_bf16_f32 v32, v32, v33
v_cvt_pk_bf16_f32 v34, v34, v35
v_mov_b32 v33, s34
v_mov_b32 v35, s34
v_lshlrev_b32 v6, 5, v2
v_add_u32 v6, s19, v6
v_lshlrev_b32 v6, 8, v6
v_lshl_add_u32 v6, v3, 1, v6
s_lshl_b32 s21, s20, 5
s_lshl_b32 s22, s18, 3
s_add_u32 s21, s21, s22
v_add_u32 v6, s21, v6
v_lshlrev_b32 v6, 3, v6
v_add_u32 v6, 0x{WS_QA:x}, v6
v_cmp_gt_u32 vcc, 2, v2
s_and_saveexec_b64 s[22:23], vcc
global_store_dwordx4 v6, v[32:35], s[16:17] sc0 sc1
s_mov_b64 exec, s[22:23]
""")
stamp()
A(f"""
s_lshl_b32 s21, s20, 6
s_lshl_b32 s22, s18, 4
s_add_u32 s21, s21, s22
v_add_u32 v6, s21, v3
v_lshlrev_b32 v6, 13, v6
v_lshl_add_u32 v6, v2, 4, v6
s_lshl_b32 s22, s19, 8
v_add_u32 v6, s22, v6
s_mov_b32 s24, s12
s_mov_b32 s25, s13
""")
for s in range(4):
    A(f"global_load_dwordx4 a[{16+4*s}:{19+4*s}], v6, s[24:25]{NT}")
    if s < 3: A("s_add_u32 s24, s24, 32768\ns_addc_u32 s25, s25, 0")
A(f"""
s_lshl_b32 s21, s19, 7
s_lshl_b32 s22, s20, 4
s_add_u32 s21, s21, s22
v_add_u32 v6, s21, v3
v_lshlrev_b32 v6, 10, v6
v_lshl_add_u32 v6, v2, 4, v6
s_lshl_b32 s22, s18, 8
v_add_u32 v6, s22, v6
s_mov_b32 s24, s14
s_mov_b32 s25, s15
""")
for s in range(4):
    A(f"global_load_dwordx4 a[{4*s}:{4*s+3}], v6, s[24:25]{NT}")
    if s < 3: A("s_add_u32 s24, s24, 4096\ns_addc_u32 s25, s25, 0")
A(f"""
s_mul_i32 s21, s2, 7
v_add_u32 v6, s21, v3
v_add_u32 v7, 4, v6
v_min_u32 v7, 1791, v7
v_lshlrev_b32 v6, 10, v6
v_lshlrev_b32 v7, 10, v7
v_lshl_add_u32 v6, v2, 4, v6
v_lshl_add_u32 v7, v2, 4, v7
s_lshl_b32 s22, s18, 8
v_add_u32 v6, s22, v6
v_add_u32 v7, s22, v7
global_load_dwordx4 a[32:35], v6, s[40:41]{NT}
global_load_dwordx4 a[36:39], v7, s[40:41]{NT}
s_lshl_b32 s21, s30, 5
s_lshl_b32 s22, s28, 4
s_add_u32 s21, s21, s22
v_add_u32 v14, s21, v2
v_lshlrev_b32 v14, 11, v14
v_lshl_add_u32 v14, v3, 5, v14
s_lshl_b32 s22, s18, 9
v_add_u32 v14, s22, v14
v_add_u32 v14, 0x{WS_QA:x}, v14
""")
def e2_loads():
    for s in range(4):
        A(f"global_load_dwordx4 {vr(128+8*s,4)}, v14, s[16:17] offset:{128*s} sc0 sc1")
        A(f"global_load_dwordx4 {vr(132+8*s,4)}, v14, s[16:17] offset:{128*s+16} sc0 sc1")
e2_loads()
A("""
v_mov_b32 v36, 0
v_mov_b32 v37, 0
v_mov_b32 v38, 0
v_mov_b32 v39, 0
s_waitcnt vmcnt(18)
""")
for s in range(4):
    bb = 24 + 4 * (s & 1)
    build_B(bb, 42 + s // 2, s & 1)
    A.nop(2)
    A(f"v_mfma_f32_16x16x32_bf16 v[36:39], {vr(64+4*s,4)}, {vr(bb,4)}, v[36:39]")
A.nop(8)
A(f"""
v_lshlrev_b32 v6, 4, v1
s_lshl_b32 s21, s18, 10
s_add_u32 s21, s21, {SCR+4096}
v_add_u32 v6, s21, v6
ds_write_b128 v6, v[36:39]
""")
for b in range(2):
    A(f"v_mov_b32 v{45+b}, 0")
    for k in range(4):
        A(f"""
        v_lshlrev_b32 v4, 16, v{100+4*b+k}
        v_lshlrev_b32 v5, 16, v{108+k}
        v_fmac_f32 v{45+b}, v4, v5
        v_and_b32 v4, 0xffff0000, v{100+4*b+k}
        v_and_b32 v5, 0xffff0000, v{108+k}
        v_fmac_f32 v{45+b}, v4, v5
        """)
for sh in (1, 2, 4, 8, 16, 32):
    A(f"""
    v_xor_b32 v6, {sh}, v1
    v_lshlrev_b32 v6, 2, v6
    ds_bpermute_b32 v4, v6, v45
    ds_bpermute_b32 v5, v6, v46
    s_waitcnt lgkmcnt(0)
    v_add_f32 v45, v45, v4
    v_add_f32 v46, v46, v5
    """)
A(f"""
v_mul_f32 v45, 0xbfb8aa3b, v45
v_mul_f32 v46, 0xbfb8aa3b, v46
v_exp_f32 v45, v45
v_exp_f32 v46, v46
s_nop 0
v_add_f32 v45, 1.0, v45
v_add_f32 v46, 1.0, v46
v_rcp_f32 v45, v45
v_rcp_f32 v46, v46
s_nop 0
v_sub_f32 v4, 1.0, v45
v_sub_f32 v5, 1.0, v46
v_readfirstlane_b32 s50, v45
v_readfirstlane_b32 s51, v46
v_readfirstlane_b32 s52, v4
v_readfirstlane_b32 s53, v5
s_barrier
v_lshlrev_b32 v6, 2, v0
v_add_u32 v6, {SCR+4096}, v6
ds_read2st64_b32 v[52:53], v6 offset0:0 offset1:4
ds_read2st64_b32 v[54:55], v6 offset0:8 offset1:12
s_waitcnt lgkmcnt(0)
v_add_f32 v52, v52, v53
v_add_f32 v54, v54, v55
v_add_f32 v52, v52, v54
v_mov_b32 v53, s34
v_lshrrev_b32 v12, 3, v8
v_and_b32 v13, 7, v8
v_lshl_add_u32 v13, v13, 3, v11
s_lshl_b32 s21, s26, 6
v_add_u32 v13, s21, v13
s_lshl_b32 s21, s27, 1
v_add_u32 v12, s21, v12
v_lshl_add_u32 v12, v12, 1, v10
s_movk_i32 s22, 1792
v_mul_lo_u32 v12, v12, s22
v_add_u32 v12, v12, v13
v_lshlrev_b32 v12, 3, v12
v_add_u32 v12, 0x{WS_FF:x}, v12
s_cmp_lt_u32 s2, 224
s_cbranch_scc0 L_NOFFPUB
global_store_dwordx2 v12, v[52:53], s[16:17] sc0 sc1
""")
A.label("L_NOFFPUB")
A("s_waitcnt vmcnt(0)")
A.label("L_E2_CHK")
tagcheck([129 + 2 * k for k in range(16)], "L_E2_OK")
e2_loads()
A("s_waitcnt vmcnt(0)\ns_branch L_E2_CHK")
A.label("L_E2_OK")
stamp()
for s in range(4):
    for k in range(4):
        A(f"v_mov_b32 v{96+4*s+k}, v{128+8*s+2*k}")
S = 48; O = 48; P = 112
A(f"""
v_and_b32 v6, 7, v2
v_lshlrev_b32 v6, 1, v6
v_lshl_add_u32 v7, v2, 8, s33
""")
for s in range(4):
    A(f"v_add_u32 v5, {4*s}, v3\nv_xor_b32 v5, v5, v6\nv_lshl_add_u32 v{8+s}, v5, 4, v7")
def qk_rd(t):
    for s in range(4):
        A(f"ds_read_b128 {vr(128+(t*4+s)*4,4)}, v{8+s} offset:{t*4096}")
for t in range(3): qk_rd(t)
for t in range(8):
    if t + 3 < 8:
        qk_rd(t + 3); A("s_waitcnt lgkmcnt(12)")
    else:
        A(f"s_waitcnt lgkmcnt({4*(7-t)})")
    for s in range(4):
        c = "0" if s == 0 else vr(S+4*t,4)
        A(f"v_mfma_f32_16x16x32_bf16 {vr(S+4*t,4)}, {vr(128+(t*4+s)*4,4)}, {vr(96+4*s,4)}, {c}")
A.nop(8)
A(f"""
v_lshlrev_b32 v9, 4, v1
v_add_u32 v9, {SCR}, v9
s_lshl_b32 s24, s18, 13
v_add_u32 v10, s24, v9
s_barrier
""")
for t in range(8):
    A(f"ds_write_b128 v10, {vr(S+4*t,4)} offset:{t*1024}")
A("s_waitcnt lgkmcnt(0)\ns_barrier")
for o in range(1, 4):
    A(f"""
    s_add_u32 s24, s18, {o}
    s_and_b32 s24, s24, 3
    s_lshl_b32 s24, s24, 13
    v_add_u32 v10, s24, v9
    """)
    for t in range(8):
        A(f"ds_read_b128 {vr(128+32*(o-1)+4*t,4)}, v10 offset:{t*1024}")
for o in range(1, 4):
    A(f"s_waitcnt lgkmcnt({min(15,8*(3-o))})")
    for k in range(32):
        A(f"v_add_f32 v{S+k}, v{S+k}, v{128+32*(o-1)+k}")
A(f"v_max_f32 v11, v{S}, v{S+1}")
for k in range(2, 32, 2):
    A(f"v_max3_f32 v11, v11, v{S+k}, v{S+k+1}")
A(f"""
v_xor_b32 v12, 16, v1
v_lshlrev_b32 v12, 2, v12
v_xor_b32 v13, 32, v1
v_lshlrev_b32 v13, 2, v13
ds_bpermute_b32 v14, v12, v11
s_waitcnt lgkmcnt(0)
v_max_f32 v11, v11, v14
ds_bpermute_b32 v14, v13, v11
s_waitcnt lgkmcnt(0)
v_max_f32 v11, v11, v14
""")
for k in range(32):
    A(f"v_sub_f32 v{S+k}, v{S+k}, v11")
for k in range(32):
    A(f"v_exp_f32 v{S+k}, v{S+k}")
A.nop(1)
A(f"v_add_f32 v15, v{S}, v{S+1}")
for k in range(2, 32):
    A(f"v_add_f32 v15, v15, v{S+k}")
A(f"""
ds_bpermute_b32 v14, v12, v15
s_waitcnt lgkmcnt(0)
v_add_f32 v15, v15, v14
ds_bpermute_b32 v14, v13, v15
s_waitcnt lgkmcnt(0)
v_add_f32 v15, v15, v14
""")
for k in range(16):
    A(f"v_cvt_pk_bf16_f32 v{P+k}, v{S+2*k}, v{S+2*k+1}")
A(f"""
v_mov_b32 v24, v11
v_mov_b32 v25, s34
v_mov_b32 v26, v15
v_mov_b32 v27, s34
s_lshl_b32 s24, s30, 5
s_lshl_b32 s25, s28, 4
s_add_u32 s24, s24, s25
v_add_u32 v6, s24, v2
v_lshlrev_b32 v6, 6, v6
v_add_u32 v6, s31, v6
v_lshlrev_b32 v7, 4, v6
v_add_u32 v7, 0x{WS_ML:x}, v7
s_cmp_eq_u32 s18, 0
s_cbranch_scc0 L_NOML
v_cmp_gt_u32 vcc, 16, v1
s_and_saveexec_b64 s[22:23], vcc
global_store_dwordx4 v7, v[24:27], s[16:17] sc0 sc1
s_mov_b64 exec, s[22:23]
""")
A.label("L_NOML")
A(f"""
v_lshrrev_b32 v12, 2, v2
v_lshl_add_u32 v13, v3, 2, v12
v_lshlrev_b32 v14, 8, v13
v_and_b32 v13, 7, v13
v_lshl_add_u32 v14, v13, 5, v14
v_and_b32 v13, 3, v2
v_lshl_add_u32 v14, v13, 3, v14
v_add_u32 v14, s33, v14
""")
for v in range(8):
    A(f"v_xor_b32 v{128+v}, {32*v}, v14")
stamp()
bufs = [80, 84, 88, 92, 96, 100, 104, 108]
seq = [(v, u) for v in range(8) for u in range(4)]
def rd(idx):
    v, u = seq[idx]; b = bufs[idx % 8]
    A(f"ds_read_b64_tr_b16 {vr(b,2)}, v{128+v} offset:{(32*u)*256}")
    A(f"ds_read_b64_tr_b16 {vr(b+2,2)}, v{128+v} offset:{(32*u+16)*256}")
for idx in range(4): rd(idx)
for idx, (v, u) in enumerate(seq):
    if idx + 4 < len(seq):
        rd(idx + 4); A("s_waitcnt lgkmcnt(8)")
    else:
        A(f"s_waitcnt lgkmcnt({2*(len(seq)-1-idx)})")
    b = bufs[idx % 8]
    c = "0" if u == 0 else vr(O+4*v,4)
    A(f"v_mfma_f32_16x16x32_bf16 {vr(O+4*v,4)}, {vr(b,4)}, {vr(P+4*u,4)}, {c}")
    if u == 3 and v >= 1:
        pass
A.nop(8)
stamp()
A(f"""
v_lshlrev_b32 v6, 11, v6
v_lshl_add_u32 v6, v3, 4, v6
s_lshl_b32 s25, s18, 9
v_add_u32 v6, s25, v6
v_add_u32 v6, 0x{WS_OP:x}, v6
""")
for v in range(8):
    b = 80 + 4 * v
    A(f"v_cvt_pk_bf16_f32 v{b}, v{O+4*v}, v{O+4*v+1}")
    A(f"v_mov_b32 v{b+1}, s34")
    A(f"v_cvt_pk_bf16_f32 v{b+2}, v{O+4*v+2}, v{O+4*v+3}")
    A(f"v_mov_b32 v{b+3}, s34")
    A(f"global_store_dwordx4 v6, {vr(b,4)}, s[16:17] offset:{64*v} sc0 sc1")
stamp()
A(f"""
v_and_b32 v6, 7, v1
s_mul_i32 s21, s2, 7
v_add_u32 v6, s21, v6
v_min_u32 v6, 1791, v6
v_bfe_u32 v7, v1, 3, 1
s_movk_i32 s22, 1792
v_mul_lo_u32 v7, v7, s22
v_add_u32 v6, v6, v7
v_lshlrev_b32 v6, 3, v6
v_add_u32 v13, 0x{WS_FF:x}, v6
""")
def ff_loads():
    A("s_mov_b32 s24, s16\ns_mov_b32 s25, s17")
    for ms in range(8):
        A(f"global_load_dwordx2 {vr(128+4*ms,2)}, v13, s[24:25] sc0 sc1")
        A(f"s_add_u32 s24, s24, {2*1792*8}\ns_addc_u32 s25, s25, 0")
        A(f"global_load_dwordx2 {vr(130+4*ms,2)}, v13, s[24:25] sc0 sc1")
        if ms < 7: A(f"s_add_u32 s24, s24, {2*1792*8}\ns_addc_u32 s25, s25, 0")
ff_loads()
A(f"""
v_lshrrev_b32 v6, 4, v0
v_and_b32 v7, 15, v0
v_lshlrev_b32 v8, 11, v6
v_lshl_add_u32 v8, v7, 4, v8
s_lshl_b32 s21, s19, 17
s_lshl_b32 s22, s20, 8
s_add_u32 s21, s21, s22
s_add_u32 s21, s21, 0x{WS_OP:x}
v_add_u32 v8, s21, v8
v_lshlrev_b32 v9, 4, v6
s_lshl_b32 s21, s19, 10
s_add_u32 s21, s21, 0x{WS_ML:x}
v_add_u32 v9, s21, v9
""")
def e3_loads():
    A("s_mov_b32 s24, s16\ns_mov_b32 s25, s17")
    for p in range(8):
        A(f"global_load_dwordx4 {vr(48+4*p,4)}, v8, s[24:25] sc0 sc1")
        if p == 3: A(f"s_add_u32 s24, s24, {32*131072 - 3*32768}\ns_addc_u32 s25, s25, 0")
        elif p < 7: A(f"s_add_u32 s24, s24, 32768\ns_addc_u32 s25, s25, 0")
    for p in range(8):
        off = (p & 3) * 256
        if p < 4:
            A(f"global_load_dwordx4 {vr(80+4*p,4)}, v9, s[16:17] offset:{off} sc0 sc1")
        else:
            A(f"global_load_dwordx4 {vr(80+4*p,4)}, v10, s[16:17] offset:{off} sc0 sc1")
A("v_add_u32 v10, 32768, v9")
e3_loads()
A("s_waitcnt vmcnt(16)")
A.label("L_FF_CHK")
tagcheck([129 + 2 * k for k in range(16)], "L_FF_OK")
ff_loads()
A("s_waitcnt vmcnt(0)\ns_branch L_FF_CHK")
A.label("L_FF_OK")
for ms in range(1, 8):
    A(f"v_add_f32 v128, v128, v{128+4*ms}")
    A(f"v_add_f32 v130, v130, v{130+4*ms}")
c1 = f32bits(-2 * math.sqrt(2 / math.pi) * math.log2(math.e)); c2 = f32bits(0.044715)
A(f"""
v_mul_f32 v132, v128, v128
v_mul_f32 v132, v132, v128
v_mov_b32 v133, 0x{c2:08x}
v_fma_f32 v132, v132, v133, v128
v_mul_f32 v132, 0x{c1:08x}, v132
v_exp_f32 v132, v132
s_nop 0
v_add_f32 v132, 1.0, v132
v_rcp_f32 v132, v132
s_nop 0
v_mul_f32 v132, v132, v128
v_mul_f32 v132, v132, v130
v_mov_b32 v133, s52
v_mov_b32 v134, s53
v_bfe_u32 v7, v1, 3, 1
v_cmp_eq_u32 vcc, 1, v7
s_nop 1
v_cndmask_b32 v133, v133, v134, vcc
v_mul_f32 v132, v132, v133
v_and_b32 v7, 7, v1
v_cmp_eq_u32 vcc, 7, v7
s_nop 1
v_cndmask_b32 v132, v132, 0, vcc
v_cvt_pk_bf16_f32 v132, v132, v132
v_lshrrev_b32 v7, 3, v2
v_lshlrev_b32 v7, 3, v7
v_add_u32 v7, v7, v3
v_lshlrev_b32 v7, 2, v7
ds_bpermute_b32 v124, v7, v132
v_add_u32 v7, 16, v7
ds_bpermute_b32 v125, v7, v132
s_waitcnt vmcnt(0)
""")
stamp()
A.label("L_E3_CHK")
tagcheck([49 + 2 * k for k in range(16)] + [81 + 2 * k for k in range(16)], "L_E3_OK")
e3_loads()
A("s_waitcnt vmcnt(0)\ns_branch L_E3_CHK")
A.label("L_E3_OK")
stamp()
for b in range(2):
    m = [80 + 4 * (4 * b + q) for q in range(4)]
    A(f"v_max_f32 v112, v{m[0]}, v{m[1]}")
    A(f"v_max3_f32 v112, v112, v{m[2]}, v{m[3]}")
    for q in range(4):
        A(f"v_sub_f32 v{116+q}, v{m[q]}, v112")
    for q in range(4):
        A(f"v_exp_f32 v{116+q}, v{116+q}")
    A("s_nop 0")
    A(f"v_mul_f32 v113, v116, v{m[0]+2}")
    for q in range(1, 4):
        A(f"v_fmac_f32 v113, v{116+q}, v{m[q]+2}")
    for q in range(4):
        p = 4 * b + q
        for k in range(2):
            src = 48 + 4 * p + 2 * k
            d0 = 120 + 2 * k
            A(f"v_lshlrev_b32 v114, 16, v{src}")
            A(f"v_and_b32 v115, 0xffff0000, v{src}")
            if q:
                A(f"v_fmac_f32 v{d0}, v114, v{116+q}\nv_fmac_f32 v{d0+1}, v115, v{116+q}")
            else:
                A(f"v_mul_f32 v{d0}, v114, v{116+q}\nv_mul_f32 v{d0+1}, v115, v{116+q}")
    if b == 0:
        A(f"""
        s_barrier
        v_lshlrev_b32 v11, 9, v6
        v_lshl_add_u32 v11, v7, 4, v11
        v_add_u32 v11, {SCR}, v11
        v_lshlrev_b32 v12, 4, v6
        v_add_u32 v12, {SCR+8192}, v12
        """) if False else None
    if b == 0:
        A(f"""
        v_lshrrev_b32 v6, 4, v0
        v_and_b32 v7, 15, v0
        v_lshlrev_b32 v11, 9, v6
        v_lshl_add_u32 v11, v7, 4, v11
        v_add_u32 v11, {SCR}, v11
        v_lshlrev_b32 v12, 4, v6
        v_add_u32 v12, {SCR+8192}, v12
        s_barrier
        """)
    A(f"ds_write_b128 v11, v[120:123] offset:{256*b}")
    A(f"ds_write_b64 v12, v[112:113] offset:{8*b}")
A(f"""
s_waitcnt lgkmcnt(0)
s_barrier
s_cmp_lt_u32 s18, 2
s_cbranch_scc0 L_P4_NOSUM
v_lshlrev_b32 v9, 2, v0
v_add_u32 v9, {SCR}, v9
s_lshl_b32 s21, s18, 3
s_add_u32 s21, s21, {SCR+8192}
v_mov_b32 v10, s21
""")
for k in range(8):
    A(f"ds_read2st64_b32 {vr(48+2*k,2)}, v9 offset0:{4*k} offset1:{4*k+2}")
for k in range(16):
    A(f"ds_read_b64 {vr(64+2*k,2)}, v10 offset:{16*k}")
A("s_waitcnt lgkmcnt(0)")
A("v_max_f32 v112, v64, v66")
for k in range(2, 16, 2):
    A(f"v_max3_f32 v112, v112, v{64+2*k}, v{66+2*k}")
for k in range(16):
    A(f"v_sub_f32 v{64+2*k}, v{64+2*k}, v112")
for k in range(16):
    A(f"v_exp_f32 v{64+2*k}, v{64+2*k}")
A("s_nop 0")
A("v_mul_f32 v113, v64, v65\nv_mul_f32 v114, v64, v48")
for k in range(1, 16):
    A(f"v_fmac_f32 v113, v{64+2*k}, v{65+2*k}")
    A(f"v_fmac_f32 v114, v{64+2*k}, v{48+k}")
A(f"""
v_rcp_f32 v113, v113
s_nop 0
v_mul_f32 v114, v114, v113
v_cvt_pk_bf16_f32 v114, v114, v114
v_lshlrev_b32 v9, 1, v0
v_add_u32 v9, {SCR+8704}, v9
ds_write_b16 v9, v114
""")
A.label("L_P4_NOSUM")
A(f"""
s_waitcnt lgkmcnt(0)
s_barrier
v_lshrrev_b32 v9, 3, v2
v_lshlrev_b32 v9, 7, v9
v_lshl_add_u32 v9, v3, 1, v9
s_lshl_b32 s21, s18, 5
s_add_u32 s21, s21, {SCR+8704}
v_add_u32 v9, s21, v9
ds_read_u16 v48, v9
ds_read_u16 v49, v9 offset:8
ds_read_u16 v50, v9 offset:16
ds_read_u16 v51, v9 offset:24
v_mov_b32 v32, 0
v_mov_b32 v33, 0
v_mov_b32 v34, 0
v_mov_b32 v35, 0
s_waitcnt lgkmcnt(0)
""")
for s in range(4):
    bb = 28 if s & 1 else 24
    build_B(bb, 48 + s, 0)
    A.nop(2)
    A(f"v_mfma_f32_16x16x32_bf16 v[32:35], a[{16+4*s}:{19+4*s}], {vr(bb,4)}, v[32:35]")
A.nop(8)
A(f"""
v_lshlrev_b32 v9, 4, v1
s_lshl_b32 s21, s18, 10
s_add_u32 s21, s21, {SCR+12288}
v_add_u32 v9, s21, v9
ds_write_b128 v9, v[32:35]
s_waitcnt lgkmcnt(0)
s_barrier
v_lshlrev_b32 v9, 2, v0
v_add_u32 v9, {SCR+12288}, v9
ds_read2st64_b32 v[48:49], v9 offset0:0 offset1:4
ds_read2st64_b32 v[50:51], v9 offset0:8 offset1:12
v_lshrrev_b32 v7, 2, v0
v_and_b32 v52, 3, v0
v_lshrrev_b32 v53, 4, v7
v_lshl_add_u32 v52, v53, 2, v52
v_and_b32 v53, 15, v7
v_lshrrev_b32 v54, 3, v53
v_and_b32 v55, 7, v53
v_lshl_add_u32 v56, v52, 3, v55
v_lshl_add_u32 v56, v54, 7, v56
s_lshl_b32 s21, s19, 3
s_add_u32 s21, s21, s20
s_lshl_b32 s21, s21, 8
v_add_u32 v56, s21, v56
v_lshlrev_b32 v56, 3, v56
v_add_u32 v56, 0x{WS_CX:x}, v56
s_waitcnt lgkmcnt(0)
v_add_f32 v48, v48, v49
v_add_f32 v50, v50, v51
v_add_f32 v48, v48, v50
v_mov_b32 v49, s34
global_store_dwordx2 v56, v[48:49], s[16:17] sc0 sc1
""")
stamp()
A(f"""
v_bfe_u32 v6, v1, 4, 1
v_lshlrev_b32 v6, 7, v6
v_add_u32 v6, v6, v2
s_lshl_b32 s21, s19, 11
s_lshl_b32 s22, s20, 4
s_add_u32 s21, s21, s22
v_add_u32 v6, s21, v6
v_lshlrev_b32 v6, 3, v6
v_add_u32 v10, 0x{WS_CX:x}, v6
v_add_u32 v11, 4096, v10
v_add_u32 v14, 8192, v10
v_add_u32 v9, 12288, v10
""")
def cx_loads():
    for j in range(8):
        base = [10, 11, 14, 9][j // 2]
        A(f"global_load_dwordx2 {vr(48+2*j,2)}, v{base}, s[16:17] offset:{2048*(j%2)} sc0 sc1")
A.label("L_CX_POLL")
cx_loads()
A("s_waitcnt vmcnt(0)")
tagcheck([49 + 2 * j for j in range(8)], "L_CX_OK", 1)
A("s_branch L_CX_POLL")
A.label("L_CX_OK")
stamp()
A(f"""
v_add_f32 v48, v48, v50
v_add_f32 v52, v52, v54
v_add_f32 v56, v56, v58
v_add_f32 v60, v60, v62
v_add_f32 v48, v48, v52
v_add_f32 v56, v56, v60
v_add_f32 v48, v48, v56
v_mov_b32 v49, s50
v_mov_b32 v50, s51
v_bfe_u32 v7, v1, 4, 1
v_cmp_eq_u32 vcc, 1, v7
s_nop 1
v_cndmask_b32 v49, v49, v50, vcc
v_mul_f32 v48, v48, v49
v_cvt_pk_bf16_f32 v48, v48, v48
v_lshrrev_b32 v7, 3, v2
v_lshlrev_b32 v7, 4, v7
v_add_u32 v7, v7, v3
v_lshlrev_b32 v7, 2, v7
ds_bpermute_b32 v120, v7, v48
v_add_u32 v7, 16, v7
ds_bpermute_b32 v121, v7, v48
v_add_u32 v7, 16, v7
ds_bpermute_b32 v122, v7, v48
v_add_u32 v7, 16, v7
ds_bpermute_b32 v123, v7, v48
v_mov_b32 v32, 0
v_mov_b32 v33, 0
v_mov_b32 v34, 0
v_mov_b32 v35, 0
s_waitcnt lgkmcnt(0)
""")
for s in range(6):
    bb = 28 if s & 1 else 24
    build_B(bb, 120 + s, 0)
    A.nop(2)
    a = f"a[{4*s}:{4*s+3}]" if s < 4 else f"a[{32+4*(s-4)}:{35+4*(s-4)}]"
    A(f"v_mfma_f32_16x16x32_bf16 v[32:35], {a}, {vr(bb,4)}, v[32:35]")
A.nop(8)
A(f"""
v_lshrrev_b32 v6, 3, v2
v_lshlrev_b32 v6, 9, v6
v_lshl_add_u32 v6, v3, 5, v6
v_and_b32 v7, 7, v2
v_add_u32 v6, v6, v7
s_lshl_b32 s21, s18, 7
v_add_u32 v6, s21, v6
s_lshl_b32 s21, s2, 10
v_add_u32 v6, s21, v6
v_lshlrev_b32 v6, 3, v6
v_add_u32 v6, 0x{WS_PT:x}, v6
""")
for r in range(4):
    A(f"v_mov_b32 v{48+2*r}, v{32+r}\nv_mov_b32 v{49+2*r}, s34")
    A(f"global_store_dwordx2 v6, {vr(48+2*r,2)}, s[16:17] offset:{64*r} sc0 sc1")
stamp()
A(f"""
s_cmp_lt_u32 s2, 64
s_cbranch_scc0 L_END
v_lshrrev_b32 v6, 3, v0
v_and_b32 v7, 7, v0
v_lshlrev_b32 v8, 13, v6
v_lshl_add_u32 v8, v7, 4, v8
s_lshl_b32 s21, s2, 7
s_add_u32 s21, s21, 0x{WS_PT:x}
v_add_u32 v8, s21, v8
""")
A.label("L_E4_POLL")
A("s_mov_b32 s24, s16\ns_mov_b32 s25, s17")
for p in range(8):
    A(f"global_load_dwordx4 {vr(48+4*p,4)}, v8, s[24:25] sc0 sc1")
    if p < 7: A(f"s_add_u32 s24, s24, {32*8192}\ns_addc_u32 s25, s25, 0")
A("s_waitcnt vmcnt(0)")
tagcheck([49 + 2 * k for k in range(16)], "L_E4_OK", 1)
A("s_branch L_E4_POLL")
A.label("L_E4_OK")
for p in range(1, 8):
    A(f"v_add_f32 v48, v48, v{48+4*p}")
    A(f"v_add_f32 v50, v50, v{50+4*p}")
A(f"""
v_mov_b32 v49, v50
v_lshlrev_b32 v9, 6, v6
v_lshl_add_u32 v9, v7, 3, v9
v_add_u32 v9, {SCR+16384}, v9
ds_write_b64 v9, v[48:49]
s_waitcnt lgkmcnt(0)
s_barrier
v_cmp_gt_u32 vcc, 16, v0
s_and_saveexec_b64 s[22:23], vcc
s_cbranch_execz L_END2
v_lshlrev_b32 v9, 2, v0
v_add_u32 v9, {SCR+16384}, v9
""")
for k in range(32):
    A(f"ds_read_b32 v{48+k}, v9 offset:{64*k}")
A("s_waitcnt lgkmcnt(0)")
for k in range(1, 32):
    A(f"v_add_f32 v48, v48, v{48+k}")
A(f"""
v_cvt_pk_bf16_f32 v48, v48, v48
s_lshl_b32 s21, s2, 5
v_lshlrev_b32 v9, 1, v0
v_add_u32 v9, s21, v9
global_store_short v9, v48, s[44:45]
""")
A.label("L_END2")
A("s_mov_b64 exec, s[22:23]")
A.label("L_END")
A("s_waitcnt vmcnt(0)")
stamp()
stamp_flush()
A.label("L_EXIT")
A("s_endpgm")
A.end_kernel(KN, 320, sgpr=100, accum=256)
open(sys.argv[1], "w").write(hdr + A.text())
```
